```python
import torch

def _softmax(x, axis=-1):
    return torch.softmax(x, dim=axis)
def _gelu(x):
    return torch.nn.functional.gelu(x, approximate="tanh")
def _silu(x):
    return torch.nn.functional.silu(x)
def _sigmoid(x):
    return torch.sigmoid(x)
def _layernorm(x, axis=-1, eps=1e-5):
    m = x.mean(dim=axis, keepdim=True)
    v = x.var(dim=axis, keepdim=True, unbiased=False)
    return (x - m) / torch.sqrt(v + eps)
def _scatter_add(tgt, idx, src, axis=0):
    return tgt.clone().index_add_(axis, idx, src)
def _segment_sum(src, seg, n):
    out = torch.zeros((n,) + src.shape[1:], dtype=src.dtype)
    return out.index_add_(0, seg, src)
def _pad(x, pw):
    flat = tuple(v for pair in reversed(pw) for v in pair)
    return torch.nn.functional.pad(x, flat)

kernel_name = 'interleave_layers__ssm_conv_h3__glu_gated_geglu__prompt'

def setup_inputs():

    _w = (lambda a: (lambda t: t.to(torch.bfloat16) if t.is_floating_point() else t)(torch.as_tensor(a)))
    def _A_setup():
        B, S, D = 1, 2048, 512
        ks = 4
        return {
            "q": _w((lambda *s: torch.randn(*s, dtype=torch.bfloat16) * 0.05)(B, S, D)),
            "k": _w((lambda *s: torch.randn(*s, dtype=torch.bfloat16) * 0.2)(B, S, D)),
            "v": _w((lambda *s: torch.randn(*s, dtype=torch.bfloat16) * 0.2)(B, S, D)),
            "shift_k": _w((lambda *s: torch.randn(*s, dtype=torch.bfloat16) * 0.2)(D, ks) * 0.5),
            "ssm_k": _w((lambda *s: torch.randn(*s, dtype=torch.bfloat16) * 0.4)(D, S) * (1.0 / S ** 0.5)),
            "ssm_D": _w((lambda *s: torch.randn(*s, dtype=torch.bfloat16) * 0.2)(D)),
        }
    _A_in = _A_setup()

    def _B_setup():
        B, S, Dm, Df = 1, 2048, 512, 1792
        return {
            "x": _w((lambda *s: torch.randn(*s, dtype=torch.bfloat16) * 0.05)(B, S, Dm)),
            "w_gate": _w((lambda *s: torch.randn(*s, dtype=torch.bfloat16) * 0.4)(Dm, Df) * (Dm ** -0.5)),
            "w_up": _w((lambda *s: torch.randn(*s, dtype=torch.bfloat16) * 0.4)(Dm, Df) * (Dm ** -0.5)),
            "w_down": _w((lambda *s: torch.randn(*s, dtype=torch.bfloat16) * 0.4)(Df, Dm) * (Df ** -0.5)),
        }
    _B_in = _B_setup()

    return {
        "A_q": _A_in["q"],
        "A_k": _A_in["k"],
        "A_v": _A_in["v"],
        "A_shift_k": _A_in["shift_k"],
        "A_ssm_k": _A_in["ssm_k"],
        "A_ssm_D": _A_in["ssm_D"],
        "B_x": _B_in["x"],
        "B_w_gate": _B_in["w_gate"],
        "B_w_up": _B_in["w_up"],
        "B_w_down": _B_in["w_down"],
    }

def reference(A_q, A_k, A_v, A_shift_k, A_ssm_k, A_ssm_D, B_x, B_w_gate, B_w_up, B_w_down):
    def _A_ref(q, k, v, shift_k, ssm_k, ssm_D):
        B, S, D = q.shape
        ks = shift_k.shape[-1]
        k_pad = _pad(k, ((0, 0), (ks - 1, 0), (0, 0)))
        k_shift = torch.zeros_like(k)
        for t in range(ks):
            k_shift = k_shift + k_pad[:, t:t + S, :] * shift_k[:, ks - 1 - t][None, None, :]
        kv = k_shift * v
        L = 2 * S
        kv_pad = _pad(kv, ((0, 0), (0, S), (0, 0)))
        kf_pad = _pad(ssm_k, ((0, 0), (0, S)))
        kv_f = (lambda x, axes=(-2,-1): torch.fft.rfft2(x.float(), dim=axes))(kv_pad[:, None, :, :], axes=(1, 2))
        kf_f = (lambda x, axes=(-2,-1): torch.fft.rfft2(x.float(), dim=axes))(kf_pad[:, None, :], axes=(1, 2))
        kf_f = (lambda x, *d: x.permute(*d))(kf_f, 1, 2, 0)
        y_f = kv_f * kf_f[None, :, :, :]
        y = (lambda x, s, axes=(-2,-1): torch.fft.irfft2(x, s=s, dim=axes).to(torch.bfloat16))(y_f, (1, L), axes=(1, 2))[:, 0, :S, :]
        y = y + kv * ssm_D[None, None, :]
        return q * y

    def _B_ref(x, w_gate, w_up, w_down):
        g = torch.einsum("bsd,df->bsf", x, w_gate)
        u = torch.einsum("bsd,df->bsf", x, w_up)
        h = _gelu(g) * u
        return torch.einsum("bsf,fd->bsd", h, w_down)

    x = A_q
    x = x + _A_ref(_layernorm(x, axis=-1), A_k, A_v, A_shift_k, A_ssm_k, A_ssm_D)
    x = x + _B_ref(_layernorm(x, axis=-1), B_w_gate, B_w_up, B_w_down)
    x = x + _A_ref(_layernorm(x, axis=-1), A_k, A_v, A_shift_k, A_ssm_k, A_ssm_D)
    x = x + _B_ref(_layernorm(x, axis=-1), B_w_gate, B_w_up, B_w_down)
    return x
```

```python
import sys; sys.path.insert(0, "tools")
from asmlib import *

S, D, F = 2048, 512, 1792
Q, KK, VV, SH, SSMK, SSMD, BX, WG, WU, WD, OUT, DBG, WS = 4, 6, 8, 10, 12, 14, 16, 18, 20, 22, 24, 26, 28

URS   = 4224
UR    = 0x0000000
YT    = 0x0400000
W1S   = 0x0800000
W2S   = 0x0C00000
XS1   = 0x1000000
XS2   = 0x1200000
X1    = 0x1400000
X2    = 0x1600000
X3    = 0x1800000
YR    = 0x1A00000
HS1   = 0x2000000
HS2   = 0x2800000
FLAGS = 0x3000000
WS_BYTES = 268435456

def load_args(k):
    k("""    s_load_dwordx16 s[4:19], s[0:1], 0
    s_load_dwordx8 s[20:27], s[0:1], 64
    s_load_dwordx2 s[28:29], s[0:1], 96""")

def srd(k, dst, base, size, add=0):
    if add:
        k(f"    s_add_u32 s{dst}, s{base}, {hex(add)}")
        k(f"    s_addc_u32 s{dst+1}, s{base+1}, 0")
    else:
        k(f"    s_mov_b32 s{dst}, s{base}")
        k(f"    s_mov_b32 s{dst+1}, s{base+1}")
    k(f"    s_mov_b32 s{dst+2}, {hex(size)}")
    k(f"    s_mov_b32 s{dst+3}, 0x20000")

def guard(k, n, lab):
    k(f"    s_cmp_ge_u32 s2, {n}")
    k(f"    s_cbranch_scc1 {lab}")
```

```python
from common import *

UCH = 34048
CS = 4160
HB = 2 * UCH
HCH = 7600
XB = HB + 2 * HCH
XB = (XB + 255) // 256 * 256
CONV_LDS = XB + 4 * 4096

def emit_conv(k, s_cp, pfx, ysc=""):
    srd(k, 36, WS, 0x220000, UR)
    srd(k, 40, SSMK, D * S * 2)
    srd(k, 44, WS, D * S * 2, YT)
    k(f"""
    v_and_b32 v1, 63, v0                 ; lane
    v_readfirstlane_b32 s33, v0
    s_lshr_b32 s33, s33, 6               ; wave
    s_lshr_b32 s34, s33, 1               ; ci
    s_and_b32 s35, s33, 1                ; hf
    s_lshl_b32 s52, s{s_cp}, 1
    s_add_u32 s52, s52, s34              ; channel
    s_lshl_b32 s53, s52, 1
    s_and_b32 s54, s53, 0xfffffffc
    s_load_dword s55, s[{SSMD}:{SSMD+1}], s54
    ; ---- U fill : p = 1040*hf + 64 i + lane ; c = p/260, m = p%260 ; voff = ch*URS + 16 m + 2 c
    s_mul_i32 s56, s52, {URS}
    s_lshl_b32 s57, s35, 3               ; 2*c0 = 8*hf
    s_add_u32 s56, s56, s57              ; soffset
    v_lshlrev_b32 v2, 4, v1
    v_mov_b32 v3, v1                     ; m
    s_mul_i32 s57, s34, {UCH}
    s_mul_i32 s58, s35, {1040 * 16}
    s_add_u32 s57, s57, s58""")
    for i in range(17):
        k(f"    s_add_u32 m0, s57, {1024 * i}")
        k(f"    buffer_load_dwordx4 v2, s[36:39], s56 offen lds")
        if i < 16:
            k(f"""    v_add_u32 v3, 64, v3
    v_cmp_le_u32 vcc, 260, v3
    v_add_u32 v2, 1024, v2
    v_subrev_u32 v4, 260, v3
    v_add_u32 v5, {hex((-4160 + 2) & 0xffffffff)}, v2
    v_cndmask_b32 v3, v3, v4, vcc
    v_cndmask_b32 v2, v2, v5, vcc""")
    k(f"""
    s_lshl_b32 s56, s52, 12              ; ch*4096
    s_lshl_b32 s58, s35, 11              ; hf*2048
    s_add_u32 s56, s56, s58
    v_lshlrev_b32 v2, 4, v1
    buffer_load_dwordx4 v[8:11], v2, s[40:43], s56 offen
    buffer_load_dwordx4 v[12:15], v2, s[40:43], s56 offen offset:1024
    s_mul_i32 s58, s34, {HCH}
    s_add_u32 s58, s58, {HB}
    s_lshl_b32 s59, s35, 7
    v_add_u32 v3, s59, v1
    v_min_u32 v4, 154, v3
    v_lshlrev_b32 v4, 4, v4
    v_add_u32 v4, s58, v4
    v_add_u32 v5, 64, v3
    v_min_u32 v5, 154, v5
    v_lshlrev_b32 v5, 4, v5
    v_add_u32 v5, s58, v5
    v_mov_b32 v16, 0
    v_mov_b32 v17, 0
    v_mov_b32 v18, 0
    v_mov_b32 v19, 0
    ds_write_b128 v4, v[16:19]
    ds_write_b128 v5, v[16:19]
    v_lshrrev_b32 v3, 2, v1
    s_lshl_b32 s59, s35, 5
    s_add_u32 s59, s59, 31
    v_add_u32 v3, s59, v3
    v_mul_u32_u24 v3, 80, v3
    v_and_b32 v4, 3, v1
    v_lshlrev_b32 v4, 4, v4
    v_add_u32 v3, v3, v4
    v_add_u32 v3, s58, v3
    s_waitcnt vmcnt(0)
    ds_write_b128 v3, v[8:11]
    ds_write_b128 v3, v[12:15] offset:1280
    v_and_b32 v2, 31, v1                 ; i / n
    v_lshrrev_b32 v3, 5, v1              ; g
    v_and_b32 v4, 7, v2
    v_sub_u32 v4, 7, v4
    v_mul_u32_u24 v4, {CS}, v4
    v_lshrrev_b32 v5, 3, v2
    v_sub_u32 v5, v3, v5                 ; g - (i>>3)
    v_add_u32 v5, 255, v5
    v_lshlrev_b32 v5, 4, v5
    v_add_u32 v4, v4, v5
    s_mul_i32 s59, s34, {UCH}
    s_lshl_b32 s60, s35, 10              ; 1024*hf
    s_sub_u32 s59, s59, s60
    s_sub_u32 s59, s59, {64 * 47}
    v_add_u32 v6, s59, v4
    v_mul_u32_u24 v4, 80, v2
    v_lshlrev_b32 v5, 4, v3
    v_add_u32 v4, v4, v5
    s_mul_i32 s60, s35, {80 * 16}
    s_sub_u32 s60, s58, s60
    s_add_u32 s60, s60, {80 * 31 - 80 * 15}
    v_add_u32 v7, s60, v4""")
    for r in range(32):
        k(f"    v_accvgpr_write_b32 a{r}, 0")
    k("    s_waitcnt lgkmcnt(0)")
    k("    s_barrier")
    NS = 3
    base = 32
    def reads(n):
        t, kh = n >> 1, n & 1
        b = base + 16 * (n % NS)
        k(f"    ds_read_b128 v[{b}:{b+3}], v6 offset:{64 * (47 - t) + 32 * kh}")
        k(f"    ds_read_b128 v[{b+4}:{b+7}], v7 offset:{80 * (15 - t) + 32 * kh}")
        k(f"    ds_read_b128 v[{b+8}:{b+11}], v7 offset:{80 * (15 - t) + 32 * kh + 2560}")
        k(f"    ds_read_b128 v[{b+12}:{b+15}], v6 offset:{64 * (15 - t) + 32 * kh}")
    reads(0); reads(1)
    for n in range(32):
        if n + 2 < 32: reads(n + 2)
        out = 8 if n + 2 < 32 else (4 if n + 1 < 32 else 0)
        b = base + 16 * (n % NS)
        k(f"    s_waitcnt lgkmcnt({out + 2})")
        k(f"    v_mfma_f32_32x32x16_bf16 a[0:15], v[{b}:{b+3}], v[{b+4}:{b+7}], a[0:15]")
        k(f"    s_waitcnt lgkmcnt({out + 1})")
        k(f"    v_mfma_f32_32x32x16_bf16 a[16:31], v[{b}:{b+3}], v[{b+8}:{b+11}], a[16:31]")
        k(f"    s_waitcnt lgkmcnt({out})")
        k(f"    v_mfma_f32_32x32x16_bf16 a[16:31], v[{b+12}:{b+15}], v[{b+4}:{b+7}], a[16:31]")
    k(f"""
    v_lshlrev_b32 v8, 4, v1
    s_lshl_b32 s59, s33, 12
    s_add_u32 s59, s59, {XB}
    v_add_u32 v9, s59, v8
    s_xor_b32 s60, s33, 1
    s_lshl_b32 s60, s60, 12
    s_add_u32 s60, s60, {XB}
    v_add_u32 v10, s60, v8
    s_cmp_eq_u32 s35, 0
    s_cbranch_scc1 {pfx}_h0""")
    for r in range(16): k(f"    v_accvgpr_read_b32 v{32 + r}, a{r}")
    for r in range(16): k(f"    v_accvgpr_read_b32 v{48 + r}, a{16 + r}")
    k(f"    s_branch {pfx}_x")
    k(f"{pfx}_h0:")
    k("    s_nop 7")
    for r in range(16): k(f"    v_accvgpr_read_b32 v{32 + r}, a{16 + r}")
    for r in range(16): k(f"    v_accvgpr_read_b32 v{48 + r}, a{r}")
    k(f"{pfx}_x:")
    for q in range(4):
        k(f"    ds_write_b128 v9, v[{32 + 4 * q}:{35 + 4 * q}] offset:{1024 * q}")
    k(f"""
    v_lshlrev_b32 v11, 5, v2             ; 32 n
    v_lshlrev_b32 v12, 2, v3             ; 4 hi
    v_add_u32 v11, v11, v12
    s_lshl_b32 s59, s35, 10
    v_add_u32 v11, s59, v11              ; t0 (q=0)
    v_lshlrev_b32 v12, 1, v11            ; 2*t0
    s_mul_i32 s60, s34, {UCH}
    s_add_u32 s60, s60, {2 * 2044 - 48}
    v_sub_u32 v13, s60, v12
    ds_read_b64 v[16:17], v13 offset:48
    ds_read_b64 v[18:19], v13 offset:32
    ds_read_b64 v[20:21], v13 offset:16
    ds_read_b64 v[22:23], v13 offset:0
    s_waitcnt lgkmcnt(0)
    s_barrier""")
    for q in range(4):
        k(f"    ds_read_b128 v[{32 + 4 * q}:{35 + 4 * q}], v10 offset:{1024 * q}")
    k(f"""
    s_and_b32 s59, s52, 1
    s_lshl_b32 s59, s59, 4
    s_lshr_b32 s55, s55, s59
    s_lshl_b32 s55, s55, 16
    s_lshl_b32 s56, s52, 12
    s_waitcnt lgkmcnt(0)""")
    for q in range(4):
        u0, u1 = 16 + 2 * q, 17 + 2 * q
        A = 48 + 4 * q; P = 32 + 4 * q
        k(f"""    v_add_f32 v{A}, v{A}, v{P}
    v_add_f32 v{A+1}, v{A+1}, v{P+1}
    v_add_f32 v{A+2}, v{A+2}, v{P+2}
    v_add_f32 v{A+3}, v{A+3}, v{P+3}
    v_and_b32 v24, 0xffff0000, v{u1}
    v_lshlrev_b32 v25, 16, v{u1}
    v_and_b32 v26, 0xffff0000, v{u0}
    v_lshlrev_b32 v27, 16, v{u0}
    v_fmac_f32 v{A}, s55, v24
    v_fmac_f32 v{A+1}, s55, v25
    v_fmac_f32 v{A+2}, s55, v26
    v_fmac_f32 v{A+3}, s55, v27
    v_cvt_pk_bf16_f32 v{64 + 2 * q}, v{A}, v{A+1}
    v_cvt_pk_bf16_f32 v{65 + 2 * q}, v{A+2}, v{A+3}""")
    for q in range(4):
        k(f"    buffer_store_dwordx2 v[{64 + 2 * q}:{65 + 2 * q}], v12, s[44:47], s56 offen offset:{16 * q} {ysc}")

def emit_conv_kernel(k):
    kernel_head(k, "conv_kernel")
    guard(k, 256, "conv_done")
    load_args(k)
    k("    s_waitcnt lgkmcnt(0)")
    k("    s_mov_b32 s30, s2")
    emit_conv(k, 30, "conv")
    k("conv_done:")
    k("    s_endpgm")
    kernel_desc(k, "conv_kernel", 96 + 32, 64, accum=96)
```

```python
from common import *
from ln import team_member

SLOT = 28672
NSLOT = 5
G1_LDS = SLOT * NSLOT

def gelu_mul(k, g, u, t0, t1, c0s, c1s):
    k(f"    v_mul_f32 v{t0}, v{g}, v{g}")
    k(f"    v_fma_f32 v{t0}, v{t0}, s{c1s}, v{t1}")
    k(f"    v_mul_f32 v{t0}, v{t0}, v{g}")
    k(f"    v_exp_f32 v{t0}, v{t0}")
    k(f"    v_mul_f32 v{g}, v{g}, v{u}")
    k(f"    v_add_f32 v{t0}, 1.0, v{t0}")
    k(f"    v_rcp_f32 v{t0}, v{t0}")
    k(f"    v_mul_f32 v{g}, v{g}, v{t0}")

def emit_g1(k, sT, sJ, xs_off, hs_off, ld="", st=""):
    srd(k, 36, WS, S * D * 2, xs_off)
    srd(k, 40, WS, 0x380000, W1S)
    srd(k, 44, WS, 0x700000, hs_off)
    BREG = 128
    RING = 16
    k(f"""
    v_and_b32 v1, 63, v0
    v_readfirstlane_b32 s33, v0
    s_lshr_b32 s33, s33, 6               ; wave
    v_lshlrev_b32 v2, 4, v1              ; lane*16
    s_lshl_b32 s34, s{sT}, 2
    s_add_u32 s34, s34, s33
    s_lshl_b32 s52, s34, 15
    s_mul_i32 s53, s{sJ}, {8 * SLOT}
    s_mul_i32 s54, s33, 7168
    s_add_u32 s53, s53, s54
    s_mov_b32 s55, s54""")
    for sl in range(NSLOT):
        k(f"    v_add_u32 v{8 + sl}, {sl * SLOT}, v2")
    def issue_chunk(c):
        for ks in range(4):
            r = BREG + 16 * c + 4 * ks
            k(f"    buffer_load_dwordx4 v[{r}:{r+3}], v2, s[36:39], s52 offen offset:{1024 * ks} {ld}")
        k("    s_add_u32 s52, s52, 4096")
        for i in range(7):
            k(f"    s_add_u32 m0, s55, {(c % NSLOT) * SLOT + 1024 * i}")
            k(f"    buffer_load_dwordx4 v2, s[40:43], s53 offen lds")
            k(f"    s_add_u32 s53, s53, {1024 if i < 6 else SLOT - 6 * 1024}")
    for c in range(5): issue_chunk(c)
    for r in range(112):
        k(f"    v_accvgpr_write_b32 a{r}, 0")
    PD = 5
    NF = 224
    waitN = [44, 33, 22, 22, 22, 22, 11, 0]
    def read(n):
        c, rem = divmod(n, 28)
        if rem == 0:
            k(f"    s_waitcnt vmcnt({waitN[c]})")
            k("    s_barrier")
            if 2 <= c <= 4: issue_chunk(c + 3)
        b = RING + 4 * (n % 8)
        k(f"    ds_read_b128 v[{b}:{b+3}], v{8 + c % NSLOT} offset:{rem * 1024}")
    for n in range(PD): read(n)
    for n in range(NF):
        if n + PD < NF: read(n + PD)
        out = min(PD, NF - 1 - n)
        c, rem = divmod(n, 28)
        ks, j = divmod(rem, 7)
        b = RING + 4 * (n % 8)
        B = BREG + 16 * c + 4 * ks
        k(f"    s_waitcnt lgkmcnt({out})")
        k(f"    v_mfma_f32_32x32x16_bf16 a[{16*j}:{16*j+15}], v[{b}:{b+3}], v[{B}:{B+3}], a[{16*j}:{16*j+15}]")
    k(f"""
    s_mov_b32 s56, 0xbdd2d3e8
    v_mov_b32 v6, 0xc0135761
    s_mul_i32 s57, s34, 112
    s_mul_i32 s58, s{sJ}, 7
    s_add_u32 s57, s57, s58
    s_lshl_b32 s57, s57, 10""")
    for j in range(7):
        for r in range(16):
            k(f"    v_accvgpr_read_b32 v{48 + r}, a{16 * j + r}")
        for r in range(8):
            gelu_mul(k, 48 + r, 56 + r, 64 + (r & 3), 6, 0, 56)
        for d in range(4):
            k(f"    v_cvt_pk_bf16_f32 v{68 + 4 * (j & 1) + d}, v{48 + 2 * d}, v{49 + 2 * d}")
        b = 68 + 4 * (j & 1)
        k(f"    buffer_store_dwordx4 v[{b}:{b+3}], v2, s[44:47], s57 offen {st}")
        if j < 6: k("    s_add_u32 s57, s57, 1024")

G2_LDS = 65536
def emit_g2(k, sT, sJ, hs_off, res_off, out_ptr, out_off, ld="", st=""):
    srd(k, 36, WS, 0x700000, hs_off)
    srd(k, 40, WS, 0x1C0000, W2S)
    srd(k, 44, WS, S * D * 2, res_off)
    srd(k, 48, out_ptr, S * D * 2, out_off)
    RING = 32; DEPTH = 12
    k(f"""
    v_and_b32 v1, 63, v0
    v_readfirstlane_b32 s33, v0
    s_lshr_b32 s33, s33, 6
    v_lshlrev_b32 v2, 4, v1
    s_and_b32 s34, s{sJ}, 7              ; dp
    s_lshr_b32 s35, s{sJ}, 3
    s_lshl_b32 s52, s{sT}, 2
    s_lshl_b32 s35, s35, 1
    s_add_u32 s52, s52, s35
    s_mul_i32 s53, s34, 112
    s_mul_i32 s54, s33, 28
    s_add_u32 s53, s53, s54
    s_lshl_b32 s53, s53, 11
    s_mul_i32 s55, s52, 112
    s_add_u32 s55, s55, s54
    s_lshl_b32 s55, s55, 10
    s_add_u32 s56, s55, {112 * 1024}""")
    def issue(ks):
        b = RING + 16 * (ks % DEPTH)
        k(f"    buffer_load_dwordx4 v[{b}:{b+3}], v2, s[40:43], s53 offen")
        k(f"    buffer_load_dwordx4 v[{b+4}:{b+7}], v2, s[40:43], s53 offen offset:1024")
        k(f"    buffer_load_dwordx4 v[{b+8}:{b+11}], v2, s[36:39], s55 offen {ld}")
        k(f"    buffer_load_dwordx4 v[{b+12}:{b+15}], v2, s[36:39], s56 offen {ld}")
        k("    s_add_u32 s53, s53, 2048")
        k("    s_add_u32 s55, s55, 1024")
        k("    s_add_u32 s56, s56, 1024")
    for ks in range(DEPTH - 1): issue(ks)
    for r in range(64):
        k(f"    v_accvgpr_write_b32 a{r}, 0")
    for ks in range(28):
        if ks + DEPTH - 1 < 28: issue(ks + DEPTH - 1)
        out = 4 * min(DEPTH - 1, 27 - ks)
        b = RING + 16 * (ks % DEPTH)
        k(f"    s_waitcnt vmcnt({out})")
        for dt in range(2):
            for tt in range(2):
                A = 16 * (2 * dt + tt)
                k(f"    v_mfma_f32_32x32x16_bf16 a[{A}:{A+15}], v[{b+4*dt}:{b+4*dt+3}], v[{b+8+4*tt}:{b+11+4*tt}], a[{A}:{A+15}]")
    k(f"""
    s_lshr_b32 s57, s33, 1
    s_and_b32 s58, s33, 1
    v_and_b32 v3, 31, v1                 ; n
    v_lshrrev_b32 v4, 5, v1              ; hi
    s_add_u32 s59, s52, s58
    s_lshl_b32 s59, s59, 5               ; token0
    v_add_u32 v3, s59, v3
    v_lshlrev_b32 v3, 10, v3             ; token*1024
    v_lshlrev_b32 v4, 3, v4
    v_add_u32 v3, v3, v4
    s_lshl_b32 s60, s34, 7
    s_lshl_b32 s61, s57, 6
    s_add_u32 s60, s60, s61""")
    for q in range(4):
        k(f"    buffer_load_dwordx2 v[{16 + 2 * q}:{17 + 2 * q}], v3, s[44:47], s60 offen offset:{16 * q} {ld}")
    k("    s_lshl_b32 s61, s33, 12")
    k("    v_add_u32 v5, s61, v2")
    for o in range(4):
        lab = k.label("g2skip")
        k(f"    s_cmp_eq_u32 s33, {o}")
        k(f"    s_cbranch_scc1 {lab}")
        k("    s_nop 7")
        for r in range(16):
            k(f"    v_accvgpr_read_b32 v{32 + r}, a{16 * o + r}")
        for q in range(4):
            k(f"    ds_write_b128 v5, v[{32 + 4 * q}:{35 + 4 * q}] offset:{o * 16384 + 1024 * q}")
        k(f"{lab}:")
    for o in range(4):
        lab = k.label("g2own")
        k(f"    s_cmp_lg_u32 s33, {o}")
        k(f"    s_cbranch_scc1 {lab}")
        for r in range(16):
            k(f"    v_accvgpr_read_b32 v{48 + r}, a{16 * o + r}")
        k(f"{lab}:")
    k("""    s_waitcnt lgkmcnt(0)
    s_barrier
    s_lshl_b32 s61, s33, 14
    v_add_u32 v5, s61, v2""")
    for w in range(4):
        lab = k.label("g2rd")
        k(f"    s_cmp_eq_u32 s33, {w}")
        k(f"    s_cbranch_scc1 {lab}")
        for q in range(4):
            k(f"    ds_read_b128 v[{32 + 4 * q}:{35 + 4 * q}], v5 offset:{w * 4096 + 1024 * q}")
        k("    s_waitcnt lgkmcnt(0)")
        for r in range(16):
            k(f"    v_add_f32 v{48 + r}, v{48 + r}, v{32 + r}")
        k(f"{lab}:")
    k("    s_waitcnt vmcnt(0)")
    for q in range(4):
        x0, x1 = 16 + 2 * q, 17 + 2 * q
        A = 48 + 4 * q
        k(f"""    v_lshlrev_b32 v24, 16, v{x0}
    v_and_b32 v25, 0xffff0000, v{x0}
    v_lshlrev_b32 v26, 16, v{x1}
    v_and_b32 v27, 0xffff0000, v{x1}
    v_add_f32 v{A}, v{A}, v24
    v_add_f32 v{A+1}, v{A+1}, v25
    v_add_f32 v{A+2}, v{A+2}, v26
    v_add_f32 v{A+3}, v{A+3}, v27
    v_cvt_pk_bf16_f32 v{64 + 2 * q}, v{A}, v{A+1}
    v_cvt_pk_bf16_f32 v{65 + 2 * q}, v{A+2}, v{A+3}""")
    for q in range(4):
        k(f"    buffer_store_dwordx2 v[{64 + 2 * q}:{65 + 2 * q}], v3, s[48:51], s60 offen offset:{16 * q} {st}")

def emit_g1_kernel(k, name, xs_off, hs_off):
    kernel_head(k, name)
    guard(k, 256, name + "_done")
    load_args(k)
    team_member(k, 30, 31)
    k("    s_waitcnt lgkmcnt(0)")
    emit_g1(k, 30, 31, xs_off, hs_off)
    k(name + "_done:")
    k("    s_endpgm")
    kernel_desc(k, name, 256 + 112, 72, accum=256)

def emit_g2_kernel(k, name, hs_off, res_off, out_ptr, out_off):
    kernel_head(k, name)
    guard(k, 256, name + "_done")
    load_args(k)
    team_member(k, 30, 31)
    k("    s_waitcnt lgkmcnt(0)")
    emit_g2(k, 30, 31, hs_off, res_off, out_ptr, out_off)
    k(name + "_done:")
    k("    s_endpgm")
    kernel_desc(k, name, 256 + 64, 72, accum=256)
```

```python
from common import *

def wave_sum2(k, a, b, sa, sb, t0, t1):
    for sh in (1, 2, 4, 8):
        k(f"    v_add_f32_dpp v{a}, v{a}, v{a} row_shr:{sh} row_mask:0xf bank_mask:0xf")
        k(f"    v_add_f32_dpp v{b}, v{b}, v{b} row_shr:{sh} row_mask:0xf bank_mask:0xf")
    k(f"    v_add_f32_dpp v{a}, v{a}, v{a} row_bcast:15 row_mask:0xa bank_mask:0xf")
    k(f"    v_add_f32_dpp v{b}, v{b}, v{b} row_bcast:15 row_mask:0xa bank_mask:0xf")
    k(f"    v_add_f32_dpp v{a}, v{a}, v{a} row_bcast:31 row_mask:0xc bank_mask:0xf")
    k(f"    v_add_f32_dpp v{b}, v{b}, v{b} row_bcast:31 row_mask:0xc bank_mask:0xf")
    k(f"    v_readlane_b32 s{sa}, v{a}, 63")
    k(f"    v_readlane_b32 s{sb}, v{b}, 63")

def unpack8(k, dst, src):
    for d in range(4):
        k(f"    v_lshlrev_b32 v{dst + 2 * d}, 16, v{src + d}")
        k(f"    v_and_b32 v{dst + 2 * d + 1}, 0xffff0000, v{src + d}")

def ln_rows(k, xa, xb, tmp, sbase):
    ta, tb = tmp, tmp + 1
    sm0, sm1, sr0, sr1 = sbase, sbase + 1, sbase + 2, sbase + 3
    for (x, t) in ((xa, ta), (xb, tb)):
        k(f"    v_add_f32 v{t}, v{x}, v{x+1}")
    for i in range(2, 8):
        for (x, t) in ((xa, ta), (xb, tb)):
            k(f"    v_add_f32 v{t}, v{t}, v{x+i}")
    wave_sum2(k, ta, tb, sm0, sm1, 0, 0)
    k(f"    s_mov_b32 s{sbase+4}, 0xbb000000        ; -1/512")
    k(f"    v_mov_b32 v{ta}, s{sm0}")
    k(f"    v_mov_b32 v{tb}, s{sm1}")
    k(f"    v_mul_f32 v{ta}, s{sbase+4}, v{ta}")
    k(f"    v_mul_f32 v{tb}, s{sbase+4}, v{tb}")
    for i in range(8):
        k(f"    v_add_f32 v{xa+i}, v{xa+i}, v{ta}")
        k(f"    v_add_f32 v{xb+i}, v{xb+i}, v{tb}")
    k(f"    v_mul_f32 v{ta}, v{xa}, v{xa}")
    k(f"    v_mul_f32 v{tb}, v{xb}, v{xb}")
    for i in range(1, 8):
        k(f"    v_fmac_f32 v{ta}, v{xa+i}, v{xa+i}")
        k(f"    v_fmac_f32 v{tb}, v{xb+i}, v{xb+i}")
    wave_sum2(k, ta, tb, sr0, sr1, 0, 0)
    k(f"    s_mov_b32 s{sbase+4}, 0x3b000000        ; 1/512")
    k(f"    s_mov_b32 s{sbase+5}, 0x3727c5ac        ; 1e-5")
    k(f"    v_mov_b32 v{ta}, s{sbase+5}")
    k(f"    v_mov_b32 v{tb}, s{sbase+5}")
    k(f"    v_mov_b32 v{tmp+2}, s{sr0}")
    k(f"    v_mov_b32 v{tmp+3}, s{sr1}")
    k(f"    v_fmac_f32 v{ta}, s{sbase+4}, v{tmp+2}")
    k(f"    v_fmac_f32 v{tb}, s{sbase+4}, v{tmp+3}")
    k(f"    v_rsq_f32 v{ta}, v{ta}")
    k(f"    v_rsq_f32 v{tb}, v{tb}")
    for i in range(8):
        k(f"    v_mul_f32 v{xa+i}, v{xa+i}, v{ta}")
        k(f"    v_mul_f32 v{xb+i}, v{xb+i}, v{tb}")

def emit_ln(k, s_row0, first, xin, xin_off, xout_off, xs_off, ld="", st=""):
    srd(k, 36, xin, S * D * 2, xin_off)
    srd(k, 40, WS, S * D * 2, YT if first else YR)
    srd(k, 44, WS, S * D * 2, xout_off)
    srd(k, 48, WS, S * D * 2, xs_off)
    if first: srd(k, 52, WS, S * D * 2, YR)
    k(f"""
    v_and_b32 v1, 63, v0                 ; lane
    v_readfirstlane_b32 s33, v0
    s_lshr_b32 s33, s33, 6               ; wave
    s_lshl_b32 s34, s33, 1
    s_add_u32 s34, s34, s{s_row0}
    s_lshl_b32 s35, s34, 10
    v_lshlrev_b32 v2, 4, v1
    buffer_load_dwordx4 v[8:11], v2, s[36:39], s35 offen {ld}
    buffer_load_dwordx4 v[12:15], v2, s[36:39], s35 offen offset:1024 {ld}""")
    if first:
        k(f"""
    v_lshlrev_b32 v3, 13, v0             ; (2t)*4096
    s_lshl_b32 s56, s{s_row0}, 1
    buffer_load_dwordx4 v[16:19], v3, s[40:43], s56 offen {ld}
    v_add_u32 v3, 4096, v3
    buffer_load_dwordx4 v[20:23], v3, s[40:43], s56 offen {ld}
    s_mov_b32 s57, 0x05040100
    s_mov_b32 s58, 0x07060302
    v_lshlrev_b32 v4, 2, v0
    s_waitcnt vmcnt(0)""")
        for e in range(8):
            k(f"    v_perm_b32 v24, v{20 + (e >> 1)}, v{16 + (e >> 1)}, s{57 + (e & 1)}")
            k(f"    ds_write_b32 v4, v24 offset:{1024 * e}")
        k(f"""    s_waitcnt lgkmcnt(0)
    s_barrier
    s_lshl_b32 s56, s33, 11
    v_add_u32 v4, s56, v2
    ds_read_b128 v[16:19], v4
    ds_read_b128 v[20:23], v4 offset:1024
    s_waitcnt lgkmcnt(0)
    buffer_store_dwordx4 v[16:19], v2, s[52:55], s35 offen {st}
    buffer_store_dwordx4 v[20:23], v2, s[52:55], s35 offen offset:1024 {st}""")
    else:
        k(f"""    buffer_load_dwordx4 v[16:19], v2, s[40:43], s35 offen {ld}
    buffer_load_dwordx4 v[20:23], v2, s[40:43], s35 offen offset:1024 {ld}
    s_waitcnt vmcnt(0)""")
    unpack8(k, 32, 8); unpack8(k, 40, 12)
    unpack8(k, 48, 8); unpack8(k, 56, 12)
    unpack8(k, 64, 16); unpack8(k, 72, 20)
    ln_rows(k, 32, 40, 24, 60)
    for i in range(8):
        k(f"    v_fmac_f32 v{48+i}, v{32+i}, v{64+i}")
        k(f"    v_fmac_f32 v{56+i}, v{40+i}, v{72+i}")
    for d in range(4):
        k(f"    v_cvt_pk_bf16_f32 v{8+d}, v{48+2*d}, v{49+2*d}")
        k(f"    v_cvt_pk_bf16_f32 v{12+d}, v{56+2*d}, v{57+2*d}")
    k(f"    buffer_store_dwordx4 v[8:11], v2, s[44:47], s35 offen {st}")
    k(f"    buffer_store_dwordx4 v[12:15], v2, s[44:47], s35 offen offset:1024 {st}")
    unpack8(k, 32, 8); unpack8(k, 40, 12)
    ln_rows(k, 32, 40, 24, 60)
    for d in range(4):
        k(f"    v_cvt_pk_bf16_f32 v{16+d}, v{32+2*d}, v{33+2*d}")
        k(f"    v_cvt_pk_bf16_f32 v{20+d}, v{40+2*d}, v{41+2*d}")
    k(f"""    s_lshr_b32 s56, s34, 5
    s_lshl_b32 s56, s56, 15
    s_and_b32 s57, s34, 31
    s_lshl_b32 s57, s57, 4
    s_add_u32 s56, s56, s57
    v_lshrrev_b32 v3, 1, v1
    v_lshlrev_b32 v3, 10, v3
    v_and_b32 v4, 1, v1
    v_lshlrev_b32 v4, 9, v4
    v_add_u32 v3, v3, v4
    buffer_store_dwordx4 v[16:19], v3, s[48:51], s56 offen {st}
    buffer_store_dwordx4 v[20:23], v3, s[48:51], s56 offen offset:16 {st}""")

def team_member(k, sT, sJ):
    k(f"""    s_and_b32 s{sT}, s2, 7
    s_lshl_b32 s{sT}, s{sT}, 1
    s_lshr_b32 s{sJ}, s2, 7
    s_add_u32 s{sT}, s{sT}, s{sJ}
    s_lshr_b32 s{sJ}, s2, 3
    s_and_b32 s{sJ}, s{sJ}, 15""")

def emit_ln_kernel(k, name, first):
    kernel_head(k, name)
    guard(k, 256, name + "_done")
    load_args(k)
    team_member(k, 30, 31)
    k("""    s_lshl_b32 s32, s30, 7
    s_lshl_b32 s31, s31, 3
    s_add_u32 s32, s32, s31
    s_waitcnt lgkmcnt(0)""")
    if first: emit_ln(k, 32, True, Q, 0, X1, XS1)
    else:     emit_ln(k, 32, False, WS, X2, X3, XS2)
    k(name + "_done:")
    k("    s_endpgm")
    kernel_desc(k, name, 96, 72)
```

```python
from common import *

def emit_kv(k, s_tb, s_cb, pfx):
    srd(k, 36, KK, S * D * 2)
    srd(k, 40, VV, S * D * 2)
    srd(k, 44, SH, D * 4 * 2)
    srd(k, 48, WS, 0x220000, UR)
    k(f"""
    v_and_b32 v1, 7, v0                 ; cg
    v_lshrrev_b32 v2, 3, v0             ; tp
    v_lshlrev_b32 v3, 4, v1
    s_lshl_b32 s32, s{s_cb}, 7
    v_add_u32 v3, s32, v3
    v_lshlrev_b32 v4, 1, v2
    s_lshl_b32 s33, s{s_tb}, 6
    v_add_u32 v4, s33, v4               ; s0
    v_lshlrev_b32 v5, 10, v4
    v_add_u32 v5, v5, v3
    v_add_u32 v6, 0xfffff400, v5        ; row s0-3
    v_add_u32 v7, 0xfffff800, v5        ; row s0-2
    v_add_u32 v8, 0xfffffc00, v5        ; row s0-1
    v_lshlrev_b32 v9, 6, v1             ; 64*cg
    s_lshl_b32 s34, s{s_cb}, 9
    v_add_u32 v9, s34, v9
    buffer_load_dwordx4 v[16:19], v6, s[36:39], 0 offen
    buffer_load_dwordx4 v[20:23], v7, s[36:39], 0 offen
    buffer_load_dwordx4 v[24:27], v8, s[36:39], 0 offen
    buffer_load_dwordx4 v[28:31], v5, s[36:39], 0 offen
    buffer_load_dwordx4 v[32:35], v5, s[36:39], 0 offen offset:1024
    buffer_load_dwordx4 v[36:39], v5, s[40:43], 0 offen
    buffer_load_dwordx4 v[40:43], v5, s[40:43], 0 offen offset:1024
    buffer_load_dwordx4 v[44:47], v9, s[44:47], 0 offen
    buffer_load_dwordx4 v[48:51], v9, s[44:47], 0 offen offset:16
    buffer_load_dwordx4 v[52:55], v9, s[44:47], 0 offen offset:32
    buffer_load_dwordx4 v[56:59], v9, s[44:47], 0 offen offset:48
    v_mul_u32_u24 v10, 1056, v1
    v_sub_u32 v11, 31, v2
    v_lshlrev_b32 v11, 2, v11
    v_add_u32 v10, v10, v11
    s_waitcnt vmcnt(0)""")
    for c in range(8):
        dd, hf = c >> 1, c & 1
        def unp(dst, src):
            if hf: k(f"    v_and_b32 v{dst}, 0xffff0000, v{src}")
            else:  k(f"    v_lshlrev_b32 v{dst}, 16, v{src}")
        for j in range(5): unp(60 + j, 16 + 4 * j + dd)
        unp(65, 36 + dd); unp(66, 40 + dd)
        wA, wB = 44 + 2 * c, 44 + 2 * c + 1
        k(f"    v_lshlrev_b32 v67, 16, v{wA}")
        k(f"    v_and_b32 v68, 0xffff0000, v{wA}")
        k(f"    v_lshlrev_b32 v69, 16, v{wB}")
        k(f"    v_and_b32 v70, 0xffff0000, v{wB}")
        k("    v_mul_f32 v71, v60, v70")
        k("    v_mul_f32 v72, v61, v70")
        k("    v_fmac_f32 v71, v61, v69")
        k("    v_fmac_f32 v72, v62, v69")
        k("    v_fmac_f32 v71, v62, v68")
        k("    v_fmac_f32 v72, v63, v68")
        k("    v_fmac_f32 v71, v63, v67")
        k("    v_fmac_f32 v72, v64, v67")
        k("    v_mul_f32 v71, v71, v65")
        k("    v_mul_f32 v72, v72, v66")
        k(f"    v_cvt_pk_bf16_f32 v{74 + c}, v72, v71")
    for c in range(8):
        k(f"    ds_write_b32 v10, v{74 + c} offset:{132 * c}")
    k("""    s_waitcnt lgkmcnt(0)
    s_barrier
    v_lshrrev_b32 v12, 3, v0
    v_and_b32 v13, 7, v0                ; pc
    v_mul_u32_u24 v14, 132, v12
    v_lshlrev_b32 v15, 4, v13
    v_add_u32 v14, v14, v15
    ds_read2_b32 v[16:17], v14 offset0:0 offset1:1
    ds_read2_b32 v[18:19], v14 offset0:2 offset1:3
    v_add_u32 v14, 4224, v14            ; +32 rows * 132
    ds_read2_b32 v[20:21], v14 offset0:0 offset1:1
    ds_read2_b32 v[22:23], v14 offset0:2 offset1:3""")
    k(f"""
    s_lshl_b32 s32, s{s_cb}, 6
    v_add_u32 v12, s32, v12
    v_mul_u32_u24 v12, {URS}, v12
    v_add_u32 v12, v12, v15
    s_lshl_b32 s33, s{s_tb}, 7
    s_sub_u32 s33, 3968, s33
    v_add_u32 v24, s33, v12
    s_waitcnt lgkmcnt(0)
    buffer_store_dwordx4 v[16:19], v24, s[48:51], 0 offen
    v_add_u32 v25, {32 * URS}, v24
    buffer_store_dwordx4 v[20:23], v25, s[48:51], 0 offen
    s_cmp_lg_u32 s{s_tb}, 0
    s_cbranch_scc1 {pfx}_nopad
    v_mov_b32 v28, 0
    v_mov_b32 v29, 0
    v_mov_b32 v30, 0
    v_mov_b32 v31, 0
    v_add_u32 v26, 4096, v12
    v_add_u32 v27, {32 * URS + 4096}, v12
    buffer_store_dwordx4 v[28:31], v26, s[48:51], 0 offen
    buffer_store_dwordx4 v[28:31], v27, s[48:51], 0 offen
{pfx}_nopad:""")

def emit_w1s(k, s_fc, s_kc):
    srd(k, 36, WG, D * F * 2)
    srd(k, 40, WU, D * F * 2)
    srd(k, 48, WS, 0x380000, W1S)
    k(f"""
    v_and_b32 v1, 63, v0                 ; lane
    v_readfirstlane_b32 s33, v0
    s_lshr_b32 s33, s33, 6               ; wave
    s_and_b32 s34, s33, 1
    s_lshr_b32 s35, s33, 1               ; gate/up
    s_lshl_b32 s52, s{s_kc}, 1
    s_add_u32 s52, s52, s34
    s_mul_i32 s52, s52, {32 * 3584}
    s_mul_i32 s53, s{s_fc}, 224
    s_add_u32 s52, s52, s53
    s_mul_i32 s53, s35, 14464
    s_mul_i32 s54, s34, {32 * 224}
    s_add_u32 s53, s53, s54
    s_cmp_eq_u32 s35, 0
    s_cselect_b32 s44, s36, s40
    s_cselect_b32 s45, s37, s41
    s_mov_b32 s46, s38
    s_mov_b32 s47, 0x20000
    s_mov_b32 s55, 4682""")
    for i in range(7):
        k(f"""    v_add_u32 v2, {64 * i}, v1
    v_mul_lo_u32 v3, v2, s55
    v_lshrrev_b32 v3, 16, v3             ; row = c/14
    v_mul_u32_u24 v4, 14, v3
    v_sub_u32 v4, v2, v4                 ; p
    v_mul_u32_u24 v3, 3584, v3
    v_lshlrev_b32 v4, 4, v4
    v_add_u32 v{8 + i}, v3, v4
    s_add_u32 m0, s53, {1024 * i}
    buffer_load_dwordx4 v{8 + i}, s[44:47], s52 offen lds""")
    k(f"""
    v_lshrrev_b32 v2, 4, v1              ; q
    v_and_b32 v3, 1, v2                  ; sel
    v_lshrrev_b32 v4, 1, v2              ; g
    v_mul_u32_u24 v3, 14464, v3
    v_lshlrev_b32 v4, 3, v4
    v_bfe_u32 v5, v1, 2, 2               ; r
    v_add_u32 v4, v4, v5
    s_lshl_b32 s54, s33, 4
    v_add_u32 v4, s54, v4
    v_mul_u32_u24 v4, 224, v4
    v_add_u32 v3, v3, v4
    v_and_b32 v5, 3, v1
    v_lshlrev_b32 v5, 3, v5
    v_add_u32 v3, v3, v5
    s_lshl_b32 s54, s{s_fc}, 3
    s_add_u32 s54, s54, s{s_kc}
    s_mul_i32 s54, s54, 28
    s_mul_i32 s56, s33, 7
    s_add_u32 s54, s54, s56
    s_lshl_b32 s54, s54, 10
    v_lshlrev_b32 v6, 4, v1
    s_waitcnt vmcnt(0)
    s_barrier""")
    for j in range(7):
        k(f"    ds_read_b64_tr_b16 v[{16 + 4 * j}:{17 + 4 * j}], v3 offset:{32 * j}")
        k(f"    ds_read_b64_tr_b16 v[{18 + 4 * j}:{19 + 4 * j}], v3 offset:{32 * j + 4 * 224}")
    k("    s_waitcnt lgkmcnt(0)")
    for j in range(7):
        k(f"    buffer_store_dwordx4 v[{16 + 4 * j}:{19 + 4 * j}], v6, s[48:51], s54 offen")
        if j < 6: k("    s_add_u32 s54, s54, 1024")

def emit_w2s(k, s_dp, s_kr):
    srd(k, 44, WD, F * D * 2)
    srd(k, 48, WS, 0x1C0000, W2S)
    k(f"""
    v_and_b32 v1, 63, v0
    v_readfirstlane_b32 s33, v0
    s_lshr_b32 s33, s33, 6               ; wave
    s_mul_i32 s52, s{s_kr}, 224
    s_mul_i32 s53, s33, 56
    s_add_u32 s52, s52, s53
    s_lshl_b32 s52, s52, 10
    s_lshl_b32 s53, s{s_dp}, 7
    s_add_u32 s52, s52, s53
    v_lshrrev_b32 v2, 3, v1
    v_lshlrev_b32 v2, 10, v2
    v_and_b32 v3, 7, v1
    v_lshlrev_b32 v3, 4, v3
    v_add_u32 v2, v2, v3
    s_mul_i32 s53, s33, 7168""")
    for i in range(7):
        k(f"""    s_add_u32 m0, s53, {1024 * i}
    buffer_load_dwordx4 v2, s[44:47], s52 offen lds
    s_add_u32 s52, s52, 8192""")
    k(f"""
    v_lshrrev_b32 v2, 4, v1              ; q
    v_and_b32 v3, 1, v2                  ; dh
    v_lshrrev_b32 v4, 1, v2              ; g
    v_lshlrev_b32 v4, 2, v4
    v_bfe_u32 v5, v1, 2, 2
    v_add_u32 v4, v4, v5                 ; 4g + r
    v_lshlrev_b32 v4, 7, v4
    v_lshlrev_b32 v3, 5, v3              ; 16dh*2
    v_add_u32 v4, v4, v3
    v_and_b32 v5, 3, v1
    v_lshlrev_b32 v5, 3, v5
    v_add_u32 v4, v4, v5
    s_mul_i32 s54, s{s_dp}, 224
    s_mul_i32 s56, s{s_kr}, 28
    s_add_u32 s54, s54, s56
    s_mul_i32 s56, s33, 7
    s_add_u32 s54, s54, s56
    s_lshl_b32 s54, s54, 10
    v_lshlrev_b32 v6, 4, v1
    s_waitcnt vmcnt(0)
    s_barrier""")
    for i in range(7):
        k(f"""    s_add_u32 s57, s56, {i}
    s_lshr_b32 s58, s57, 1
    s_lshl_b32 s58, s58, 11
    s_and_b32 s57, s57, 1
    s_lshl_b32 s57, s57, 6
    s_add_u32 s58, s58, s57
    v_add_u32 v7, s58, v4
    ds_read_b64_tr_b16 v[{16 + 4 * i}:{17 + 4 * i}], v7
    ds_read_b64_tr_b16 v[{18 + 4 * i}:{19 + 4 * i}], v7 offset:1024""")
    k("    s_waitcnt lgkmcnt(0)")
    for i in range(7):
        k(f"    buffer_store_dwordx4 v[{16 + 4 * i}:{19 + 4 * i}], v6, s[48:51], s54 offen")
        if i < 6: k("    s_add_u32 s54, s54, 1024")

def emit_pre_kernel(k):
    kernel_head(k, "pre_kernel")
    guard(k, 448, "pre_done")
    load_args(k)
    k("    s_waitcnt lgkmcnt(0)")
    k("    s_cmp_ge_u32 s2, 256")
    k("    s_cbranch_scc1 pre_w")
    k("    s_lshr_b32 s30, s2, 3")
    k("    s_and_b32 s31, s2, 7")
    emit_kv(k, 30, 31, "pre")
    k("    s_branch pre_done")
    k("pre_w:")
    k("    s_cmp_ge_u32 s2, 384")
    k("    s_cbranch_scc1 pre_w2")
    k("    s_sub_u32 s30, s2, 256")
    k("    s_and_b32 s31, s30, 7")
    k("    s_lshr_b32 s30, s30, 3")
    emit_w1s(k, 30, 31)
    k("    s_branch pre_done")
    k("pre_w2:")
    k("    s_sub_u32 s30, s2, 384")
    k("    s_and_b32 s31, s30, 7")
    k("    s_lshr_b32 s30, s30, 3")
    emit_w2s(k, 30, 31)
    k("pre_done:")
    k("    s_endpgm")
    kernel_desc(k, "pre_kernel", 96, 64)
```

```python
import re

class K:
    def __init__(self):
        self.L = []
        self.nlabel = 0
    def __call__(self, s=""):
        for ln in s.split("\n"):
            self.L.append(ln)
    def label(self, base="L"):
        self.nlabel += 1
        return f"{base}_{self.nlabel}"
    def text(self, pad=True):
        L = pad_hazards(self.L) if pad else self.L
        return "\n".join(L) + "\n"

def kernel_head(k, name):
    k(".text")
    k(f".globl {name}")
    k(".p2align 8")
    k(f".type {name},@function")
    k(f"{name}:")

def kernel_desc(k, name, vgpr, sgpr=102, accum=None):
    if accum is None:
        accum = (min(vgpr, 256) + 3) // 4 * 4
    k('.section .rodata,"a"')
    k(".p2align 6")
    k(f".amdhsa_kernel {name}")
    k(f"  .amdhsa_next_free_vgpr {vgpr}")
    k(f"  .amdhsa_next_free_sgpr {sgpr}")
    k(f"  .amdhsa_accum_offset {accum}")
    k("  .amdhsa_group_segment_fixed_size 0")
    k("  .amdhsa_kernarg_size 104")
    k("  .amdhsa_user_sgpr_count 2")
    k("  .amdhsa_user_sgpr_kernarg_segment_ptr 1")
    k("  .amdhsa_system_sgpr_workgroup_id_x 1")
    k("  .amdhsa_float_denorm_mode_32 3")
    k("  .amdhsa_float_denorm_mode_16_64 3")
    k(".end_amdhsa_kernel")
    k(".text")

def v(i, n=1):
    return f"v{i}" if n == 1 else f"v[{i}:{i+n-1}]"
def a(i, n=1):
    return f"a{i}" if n == 1 else f"a[{i}:{i+n-1}]"
def s(i, n=1):
    return f"s{i}" if n == 1 else f"s[{i}:{i+n-1}]"

_REG = re.compile(r"^(-|abs\()?\|?([vas])(?:\[(\d+):(\d+)\]|(\d+))\|?\)?$")
TRANS = ("v_exp_f32", "v_log_f32", "v_rcp_f32", "v_rsq_f32", "v_sqrt_f32", "v_sin_f32", "v_cos_f32", "v_rcp_iflag_f32")

def regs_of(op):
    op = op.strip()
    if op == "vcc": return {("s", 106), ("s", 107)}
    if op == "vcc_lo": return {("s", 106)}
    if op == "vcc_hi": return {("s", 107)}
    if op == "exec": return {("s", 126), ("s", 127)}
    if op == "m0": return {("s", 124)}
    m = _REG.match(op)
    if not m: return set()
    t = m.group(2)
    if m.group(5) is not None:
        lo = hi = int(m.group(5))
    else:
        lo, hi = int(m.group(3)), int(m.group(4))
    return {(t, i) for i in range(lo, hi + 1)}

class Ins:
    __slots__ = ("text", "mn", "ops", "w", "r", "kind", "passes", "srcc", "dpp", "ab", "mods")

def parse(line):
    t = line.split(";")[0].strip()
    if not t or t.startswith(".") or t.endswith(":"):
        return None
    parts = t.split(None, 1)
    mn = parts[0]
    rest = parts[1] if len(parts) > 1 else ""
    ops = [o.strip() for o in re.split(r",(?![^\[]*\])", rest)] if rest else []
    mods = ""
    if ops:
        last = ops[-1].split(None, 1)
        if len(last) > 1 and not last[0].endswith("("):
            ops[-1] = last[0]; mods = last[1]
    I = Ins(); I.text = line; I.mn = mn; I.ops = ops; I.mods = mods
    I.w = set(); I.r = set(); I.passes = 0; I.srcc = set(); I.ab = set()
    I.dpp = ("row_" in mods or "quad_perm" in mods or "wave_" in mods or mn.endswith("_dpp"))
    base = mn
    for suf in ("_e32", "_e64", "_dpp", "_sdwa"):
        if base.endswith(suf): base = base[:-len(suf)]
    I.mn = base
    R = [regs_of(o) for o in ops]
    if base.startswith("v_mfma"):
        I.kind = "mfma"
        I.w = R[0]; I.ab = R[1] | R[2]; I.srcc = R[3]; I.r = I.ab | I.srcc
        if "32x32x16" in base or "32x32x8" in base: I.passes = 8
        elif "16x16x32" in base or "16x16x16" in base: I.passes = 4
        else: I.passes = 16
    elif base.startswith("v_"):
        I.kind = "valu"
        if base.startswith("v_cmpx"):
            I.w = R[0] | regs_of("exec"); I.r = set().union(*R[1:])
        elif base.startswith("v_cmp"):
            I.w = R[0]; I.r = set().union(*R[1:])
        elif base in ("v_add_co_u32", "v_sub_co_u32", "v_subrev_co_u32"):
            I.w = R[0] | R[1]; I.r = set().union(*R[2:])
        elif base in ("v_addc_co_u32", "v_subb_co_u32"):
            I.w = R[0] | R[1]; I.r = set().union(*R[2:])
        elif base in ("v_permlane32_swap_b32", "v_permlane16_swap_b32", "v_swap_b32"):
            I.w = R[0] | R[1]; I.r = R[0] | R[1]
        elif base in ("v_fmac_f32", "v_fmac_f16", "v_pk_fmac_f16", "v_dot2c_f32_bf16", "v_writelane_b32"):
            I.w = R[0]; I.r = set().union(*R)
        elif base == "v_cndmask_b32":
            I.w = R[0]; I.r = set().union(*R[1:])
            if len(ops) == 3: I.r |= regs_of("vcc")
        elif base == "v_nop":
            pass
        else:
            I.w = R[0] if R else set(); I.r = set().union(*R[1:]) if len(R) > 1 else set()
            if I.dpp: I.r |= R[0]
    elif base.startswith("ds_"):
        I.kind = "ds"
        if base.startswith("ds_read") or base.startswith("ds_bpermute") or base.startswith("ds_permute") or base.startswith("ds_swizzle"):
            I.w = R[0]; I.r = set().union(*R[1:]) if len(R) > 1 else set()
        else:
            I.r = set().union(*R)
    elif base.startswith("buffer_") or base.startswith("global_") or base.startswith("flat_"):
        I.kind = "vmem"
        lds = " lds" in (" " + mods)
        if base in ("buffer_wbl2", "buffer_inv"):
            pass
        elif "_load" in base and not lds and "_lds_" not in base:
            I.w = R[0]; I.r = set().union(*R[1:])
        elif "atomic" in base:
            I.r = set().union(*R)
            if "sc0" in mods: I.w = R[0]
        else:
            I.r = set().union(*R)
            if lds or "_lds_" in base: I.r |= regs_of("m0"); I.kind = "vmem_lds"
    elif base.startswith("s_"):
        I.kind = "salu"
        if base.startswith("s_cmp") or base.startswith("s_bitcmp"):
            I.r = set().union(*R) if R else set()
        elif base in ("s_waitcnt", "s_nop", "s_barrier", "s_endpgm", "s_branch", "s_sleep", "s_setprio") or base.startswith("s_cbranch"):
            pass
        elif base.endswith("saveexec_b64"):
            I.w = R[0] | regs_of("exec"); I.r = set().union(*R[1:]) | regs_of("exec")
        else:
            I.w = R[0] if R else set(); I.r = set().union(*R[1:]) if len(R) > 1 else set()
    else:
        I.kind = "other"
    return I

def _is_v(r): return r[0] in "va"

def need_states(p, c):
    n = 0
    pw_v = {r for r in p.w if _is_v(r)}
    pw_s = {r for r in p.w if r[0] == "s"}
    if p.kind == "valu":
        if c.kind == "mfma" and (pw_v & c.r): n = max(n, 2)
        if c.kind == "mfma" and (pw_s & regs_of("exec")): n = max(n, 4)
        if c.kind == "valu":
            if p.mn in TRANS and c.mn not in TRANS and (pw_v & c.r): n = max(n, 1)
            if p.mn in TRANS and c.mn in TRANS and (pw_v & c.r): n = max(n, 1)
            if (pw_s & c.r):
                if c.mn in ("v_readlane_b32", "v_writelane_b32"): n = max(n, 4)
                else: n = max(n, 2)
            if c.mn in ("v_readlane_b32", "v_readfirstlane_b32") and (pw_v & c.r): n = max(n, 1)
            if c.dpp and (pw_v & c.r): n = max(n, 2)
            if c.dpp and (pw_s & regs_of("exec")): n = max(n, 5)
            if c.mn.startswith("v_permlane") and (pw_v & c.r): n = max(n, 2)
            if p.mn.startswith("v_cmpx") and c.mn in ("v_readlane_b32", "v_readfirstlane_b32", "v_writelane_b32"): n = max(n, 4)
            if p.mn.startswith("v_cmpx") and c.mn.startswith("v_permlane"): n = max(n, 4)
        if c.kind in ("vmem", "vmem_lds") and (pw_s & c.r): n = max(n, 5)
        if c.kind == "salu" and (pw_s & c.r): n = max(n, 1)
    if p.kind == "mfma":
        P = p.passes
        t_rd = {2: 5, 4: 8, 8: 12, 16: 20}[P]
        t_ov = {2: 4, 4: 6, 8: 10, 16: 18}[P]
        t_war = {2: 1, 4: 3, 8: 7, 16: 15}[P]
        if c.kind == "mfma":
            if p.w & c.ab: n = max(n, t_rd)
            if p.w & c.srcc:
                if not (p.w == c.srcc and p.passes == c.passes): n = max(n, t_ov)
            if (p.w & c.w) and not (p.w == c.w): n = max(n, t_ov)
        elif c.kind in ("valu", "ds", "vmem", "vmem_lds"):
            if p.w & (c.r | c.w): n = max(n, t_rd)
            if c.kind == "valu" and (p.srcc & c.w): n = max(n, t_war)
    if p.kind == "salu" and c.kind == "vmem_lds" and (p.w & regs_of("m0")): n = max(n, 1)
    if p.kind == "vmem" and ("store_dwordx4" in p.mn or "store_dwordx3" in p.mn):
        data = {r for r in p.r if _is_v(r)}
        if c.kind == "valu" and (data & c.w): n = max(n, 2)
        elif c.kind in ("ds", "vmem", "mfma") and (data & c.w): n = max(n, 1)
    return n

def pad_hazards(lines, window=24):
    out = []
    hist = []
    pos = 0
    for line in lines:
        t = line.split(";")[0].strip()
        I = parse(line)
        if I is None:
            out.append(line)
            continue
        need = 0
        for (p, ppos) in hist:
            n = need_states(p, I)
            if n:
                have = pos - ppos - 1
                need = max(need, n - have)
        while need > 0:
            m = min(need, 16)
            out.append(f"    s_nop {m-1}")
            pos += m; need -= m
        out.append(line)
        if I.mn == "s_nop":
            pos += int(I.ops[0], 0) + 1
        else:
            pos += 1
        hist.append((I, pos - 1))
        if len(hist) > window: hist.pop(0)
    return out
```

```python
from common import *
from pre import *
from conv import *
from ln import *
from gemm import *
import struct, math
def f2h(x): return hex(struct.unpack("<I", struct.pack("<f", x))[0])
c0 = -2 * math.sqrt(2 / math.pi) * math.log2(math.e)
print("c0", f2h(c0), "c1", f2h(c0 * 0.044715), "1e-5", f2h(1e-5), f2h(1/512), f2h(-1/512))
hdr = open("interleave_layers__ssm_conv_h3__glu_gated_geglu__prompt.s.ref").read().split("\n")
k = K()
for ln in hdr:
    if ln.startswith("; Kernarg") or ln.startswith(";   offset"): k(ln)
k("; @launch kernel=pre_kernel grid=(448,1,1) block=(256,1,1) lds=29184")
k(f"; @launch kernel=conv_kernel grid=(256,1,1) block=(256,1,1) lds={CONV_LDS}")
k("; @launch kernel=ln1_kernel grid=(256,1,1) block=(256,1,1) lds=8192")
k(f"; @launch kernel=g1a_kernel grid=(256,1,1) block=(256,1,1) lds={G1_LDS}")
k(f"; @launch kernel=g2a_kernel grid=(256,1,1) block=(256,1,1) lds={G2_LDS}")
k("; @launch kernel=ln2_kernel grid=(256,1,1) block=(256,1,1) lds=8192")
k(f"; @launch kernel=g1b_kernel grid=(256,1,1) block=(256,1,1) lds={G1_LDS}")
k(f"; @launch kernel=g2b_kernel grid=(256,1,1) block=(256,1,1) lds={G2_LDS}")
k('.amdgcn_target "amdgcn-amd-amdhsa--gfx950"')
emit_pre_kernel(k)
emit_conv_kernel(k)
emit_ln_kernel(k, "ln1_kernel", True)
emit_g1_kernel(k, "g1a_kernel", XS1, HS1)
emit_g2_kernel(k, "g2a_kernel", HS1, X1, WS, X2)
emit_ln_kernel(k, "ln2_kernel", False)
emit_g1_kernel(k, "g1b_kernel", XS2, HS2)
emit_g2_kernel(k, "g2b_kernel", HS2, X3, OUT, 0)
out = sys.argv[1] if len(sys.argv) > 1 else "v1.s"
open(out, "w").write(k.text())
```

```python
from common import *
from ln import team_member
from ln2 import *

import os
WNT = os.environ.get("WNT", "")
W2NT = os.environ.get("W2NT", "")
SLOT = 28672
SCR = 4 * SLOT
LNB = 5 * SLOT
CHAIN_LDS = 163840

sT, sJ, sW, sPASS, sEP = 30, 31, 33, 70, 71
S_FL = 64
vL16, vB2, vB4, vFLAG = 2, 3, 4, 5

NST = [0]
STN = {}
def pstamp(k, name, per_pass=False):
    if not STAMP["on"]: return
    idx = NST[0]; NST[0] += 1
    STN[idx] = (name, per_pass)
    k("    s_memtime s[100:101]")
    k("    s_waitcnt lgkmcnt(0)")
    if per_pass:
        k(f"    s_lshl_b32 s99, s{sPASS}, 5")
        k(f"    s_add_u32 m0, s99, {idx}")
        k(f"    v_writelane_b32 v15, s100, m0")
    else:
        k(f"    v_writelane_b32 v15, s100, {idx}")

def team_barrier(k, pfx):
    lab = k.label(pfx)
    k(f"""    s_waitcnt vmcnt(0)
    s_barrier
    s_add_u32 s{sEP}, s{sEP}, 1
    s_cmp_lg_u32 s{sW}, 0
    s_cbranch_scc1 {lab}_w
    v_mov_b32 v6, s{sEP}
    s_lshl_b32 s68, s{sJ}, 2
    s_mov_b64 exec, 1
    buffer_store_dword v6, v7, s[{S_FL}:{S_FL+3}], s68 offen
    s_mov_b64 exec, -1
    s_mov_b32 s69, 0
{lab}_p:
    buffer_load_dword v6, v{vFLAG}, s[{S_FL}:{S_FL+3}], 0 offen sc1
    s_add_u32 s69, s69, 1
    s_cmp_gt_u32 s69, 200000
    s_cbranch_scc1 {lab}_w
    s_waitcnt vmcnt(0)
    v_cmp_gt_u32 vcc, s{sEP}, v6
    s_cmp_lg_u64 vcc, 0
    s_cbranch_scc1 {lab}_p
{lab}_w:
    s_barrier""")

def touch(k, srd_, s_off, nlines_log2_per_lane=7):
    k(f"    v_lshlrev_b32 v10, 7, v1")
    k(f"    buffer_load_dword v11, v10, s[{srd_}:{srd_+3}], s{s_off} offen")

def emit_ln_stage(k, first):
    PX, PY = 80, 88
    k(f"""
    s_lshl_b32 s34, s{sT}, 7
    s_lshl_b32 s35, s{sJ}, 3
    s_add_u32 s32, s34, s35
    s_lshl_b32 s34, s{sW}, 1
    s_add_u32 s34, s34, s32
    s_lshl_b32 s35, s34, 10""")
    ld = "" if first else "sc1"
    k(f"    buffer_load_dwordx4 v[{PX}:{PX+3}], v{vL16}, s[36:39], s35 offen {ld}")
    k(f"    buffer_load_dwordx4 v[{PX+4}:{PX+7}], v{vL16}, s[36:39], s35 offen offset:1024 {ld}")
    if first:
        k(f"""    v_lshlrev_b32 v24, 13, v0
    s_lshl_b32 s56, s32, 1
    buffer_load_dwordx4 v[16:19], v24, s[40:43], s56 offen
    v_add_u32 v24, 4096, v24
    buffer_load_dwordx4 v[20:23], v24, s[40:43], s56 offen
    s_mov_b32 s57, 0x05040100
    s_mov_b32 s58, 0x07060302
    v_lshlrev_b32 v25, 2, v0
    v_add_u32 v25, {LNB}, v25
    s_waitcnt vmcnt(0)""")
        pstamp(k, "ln1_loads")
        for e in range(8):
            k(f"    v_perm_b32 v{26 + (e & 1)}, v{20 + (e >> 1)}, v{16 + (e >> 1)}, s{57 + (e & 1)}")
            k(f"    ds_write_b32 v25, v{26 + (e & 1)} offset:{1024 * e}")
        unpack8(k, 32, PX); unpack8(k, 40, PX + 4)
        k(f"""    s_lshl_b32 s56, s{sW}, 11
    s_add_u32 s56, s56, {LNB}
    v_add_u32 v25, s56, v{vL16}
    s_waitcnt lgkmcnt(0)
    s_barrier
    ds_read_b128 v[{PY}:{PY+3}], v25
    ds_read_b128 v[{PY+4}:{PY+7}], v25 offset:1024""")
        ln2rows(k, 32, 40, 48, 56, 16, 56)
        k("    s_waitcnt lgkmcnt(0)")
        k(f"    buffer_store_dwordx4 v[{PY}:{PY+3}], v{vL16}, s[52:55], s35 offen")
        k(f"    buffer_store_dwordx4 v[{PY+4}:{PY+7}], v{vL16}, s[52:55], s35 offen offset:1024")
    else:
        k("    s_waitcnt vmcnt(0)")
        unpack8(k, 32, PX); unpack8(k, 40, PX + 4)
        ln2rows(k, 32, 40, 48, 56, 16, 56)
    unpack8(k, 64, PY); unpack8(k, 72, PY + 4)
    for p in range(4):
        pk(k, "v_pk_fma_f32", 32 + 2 * p, 48 + 2 * p, 64 + 2 * p, 32 + 2 * p)
        pk(k, "v_pk_fma_f32", 40 + 2 * p, 56 + 2 * p, 72 + 2 * p, 40 + 2 * p)
    for d in range(4):
        k(f"    v_cvt_pk_bf16_f32 v{PX+d}, v{32+2*d}, v{33+2*d}")
        k(f"    v_cvt_pk_bf16_f32 v{PX+4+d}, v{40+2*d}, v{41+2*d}")
    k(f"    buffer_store_dwordx4 v[{PX}:{PX+3}], v{vL16}, s[44:47], s35 offen")
    k(f"    buffer_store_dwordx4 v[{PX+4}:{PX+7}], v{vL16}, s[44:47], s35 offen offset:1024")
    unpack8(k, 32, PX); unpack8(k, 40, PX + 4)
    ln2rows(k, 32, 40, 48, 56, 16, 56)
    for d in range(4):
        k(f"    v_cvt_pk_bf16_f32 v{24+d}, v{48+2*d}, v{49+2*d}")
        k(f"    v_cvt_pk_bf16_f32 v{28+d}, v{56+2*d}, v{57+2*d}")
    k(f"""    s_lshr_b32 s56, s34, 5
    s_lshl_b32 s56, s56, 15
    s_and_b32 s57, s34, 31
    s_lshl_b32 s57, s57, 4
    s_add_u32 s56, s56, s57
    v_lshrrev_b32 v16, 1, v1
    v_lshlrev_b32 v16, 10, v16
    v_and_b32 v17, 1, v1
    v_lshlrev_b32 v17, 9, v17
    v_add_u32 v16, v16, v17
    buffer_store_dwordx4 v[24:27], v16, s[48:51], s56 offen
    buffer_store_dwordx4 v[28:31], v16, s[48:51], s56 offen offset:16""")

ACC, XR, RING = 16, 128, 224

class Sched:
    def __init__(self): self.at = {}
    def add(self, pos, lines): self.at.setdefault(pos, []).extend(lines)
    def emit(self, k, pos):
        for ln in self.at.pop(pos, []): k(ln)

def emit_g1(k, pretouch=False):
    k(f"""
    s_lshl_b32 s34, s{sT}, 2
    s_add_u32 s34, s34, s{sW}
    s_lshl_b32 s52, s34, 15""")
    issued = []
    def xl(p):
        out = []
        for ks in range(4):
            r = XR + 16 * p + 4 * ks
            pre = [f"    s_lshl_b32 s53, s{72 + p}, 12", f"    s_add_u32 s53, s53, s52"] if ks == 0 else []
            out.append((f"x{p}", pre + [f"    buffer_load_dwordx4 v[{r}:{r+3}], v{vL16}, s[36:39], s53 offen offset:{1024 * ks} sc1"]))
        return out
    def wl(p):
        out = []
        for i in range(7):
            pre = [f"    s_mul_i32 s60, s{72 + p}, {SLOT}", "    s_add_u32 s60, s60, s54"] if i == 0 else ["    s_add_u32 s60, s60, 1024"]
            out.append((f"w{p}", pre + [f"    s_add_u32 m0, s55, {(p % 5) * SLOT + 1024 * i}",
                                         f"    buffer_load_dwordx4 v{vL16}, s[40:43], s60 offen {WNT} lds"]))
        return out
    def emit_now(lst):
        for tag, lines in lst:
            for ln in lines: k(ln)
            issued.append(tag)
    issued.extend(["w4"] * 0)
    emit_now(xl(0)); emit_now(xl(1))
    pstamp(k, "g1_issue", True)
    side = {0: xl(2), 1: xl(3), 2: xl(4) + wl(5), 3: xl(5) + wl(6), 4: xl(6) + wl(7), 5: xl(7)}
    def need(p):
        last = max(i for i, t in enumerate(issued) if t in (f"x{p}", f"w{p}"))
        return len(issued) - 1 - last
    PD, NF = 5, 224
    pending = []
    def read(n):
        p, rem = divmod(n, 28)
        if rem == 0:
            assert not [e for e in pending if e[1][0] in (f"x{p}", f"w{p}")], "load not issued before its barrier"
            k(f"    s_waitcnt vmcnt({need(p)})")
            k("    s_barrier")
            pstamp(k, f"g1_B{p}", True)
            lst = side.get(p, [])
            base = max(n - PD, 0)
            for i, e in enumerate(lst):
                pending.append((base + 1 + (i * 24) // max(len(lst), 1), e))
        b = RING + 4 * (n % 8)
        sl = p % 5
        base = vL16 if sl < 2 else (vB2 if sl < 4 else vB4)
        off = (sl % 2 if sl < 4 else 0) * SLOT + rem * 1024
        k(f"    ds_read_b128 a[{b}:{b+3}], v{base} offset:{off}")
    for n in range(PD): read(n)
    for n in range(NF):
        if n + PD < NF: read(n + PD)
        out = min(PD, NF - 1 - n)
        p, rem = divmod(n, 28)
        ks, j = divmod(rem, 7)
        b = RING + 4 * (n % 8)
        B = XR + 16 * p + 4 * ks
        A = ACC + 16 * j
        k(f"    s_waitcnt lgkmcnt({out})")
        C = "0" if (p == 0 and ks == 0) else f"v[{A}:{A+15}]"
        k(f"    v_mfma_f32_32x32x16_bf16 v[{A}:{A+15}], a[{b}:{b+3}], v[{B}:{B+3}], {C}")
        while pending and pending[0][0] <= n:
            _, e = pending.pop(0)
            emit_now([e])
    assert not pending
    pstamp(k, "g1main", True)
    k(f"""
    s_mov_b32 s56, 0xbdd2d3e8
    s_mov_b32 s57, 0xbdd2d3e8
    v_mov_b32 v8, 0xc0135761
    v_mov_b32 v9, 0xc0135761
    s_mul_i32 s58, s34, 112
    s_mul_i32 s59, s{sJ}, 7
    s_add_u32 s58, s58, s59
    s_lshl_b32 s58, s58, 10""")
    for j in range(7):
        A = ACC + 16 * j
        T = 128 + 16 * (j & 1)
        for d in range(4): k(f"    v_pk_mul_f32 v[{T+2*d}:{T+2*d+1}], v[{A+2*d}:{A+2*d+1}], v[{A+2*d}:{A+2*d+1}]")
        for d in range(4): k(f"    v_pk_fma_f32 v[{T+2*d}:{T+2*d+1}], v[{T+2*d}:{T+2*d+1}], s[56:57], v[8:9]")
        for d in range(4): k(f"    v_pk_mul_f32 v[{T+2*d}:{T+2*d+1}], v[{T+2*d}:{T+2*d+1}], v[{A+2*d}:{A+2*d+1}]")
        for e in range(8): k(f"    v_exp_f32 v{T+e}, v{T+e}")
        for d in range(4): k(f"    v_pk_mul_f32 v[{A+2*d}:{A+2*d+1}], v[{A+2*d}:{A+2*d+1}], v[{A+8+2*d}:{A+8+2*d+1}]")
        for d in range(4): k(f"    v_pk_add_f32 v[{T+2*d}:{T+2*d+1}], v[{T+2*d}:{T+2*d+1}], 1.0 op_sel_hi:[1,0]")
        for e in range(8): k(f"    v_rcp_f32 v{T+e}, v{T+e}")
        for d in range(4): k(f"    v_pk_mul_f32 v[{A+2*d}:{A+2*d+1}], v[{A+2*d}:{A+2*d+1}], v[{T+2*d}:{T+2*d+1}]")
        for d in range(4): k(f"    v_cvt_pk_bf16_f32 v{T+8+d}, v{A+2*d}, v{A+2*d+1}")
        k(f"    buffer_store_dwordx4 v[{T+8}:{T+11}], v{vL16}, s[44:47], s58 offen")
        if j < 6: k("    s_add_u32 s58, s58, 1024")

def w2_load(k):
    k(f"""    s_and_b32 s34, s{sJ}, 7
    s_mul_i32 s53, s34, 112
    s_mul_i32 s35, s{sW}, 28
    s_add_u32 s53, s53, s35
    s_lshl_b32 s53, s53, 11""")
    for ks in range(28):
        k(f"    buffer_load_dwordx4 a[{8*ks}:{8*ks+3}], v{vL16}, s[48:51], s53 offen {W2NT}")
        k(f"    buffer_load_dwordx4 a[{8*ks+4}:{8*ks+7}], v{vL16}, s[48:51], s53 offen offset:1024 {W2NT}")
        if ks < 27: k("    s_add_u32 s53, s53, 2048")

def emit_g2(k):
    G2ACC = 64; BR = 128; DEPTH = 16; LEAD = 5
    k(f"""
    s_and_b32 s34, s{sJ}, 7              ; dp
    s_lshr_b32 s35, s{sJ}, 3
    s_lshl_b32 s52, s{sT}, 2
    s_lshl_b32 s35, s35, 1
    s_add_u32 s52, s52, s35
    s_mul_i32 s55, s52, 112
    s_mul_i32 s53, s{sW}, 28
    s_add_u32 s55, s55, s53
    s_lshl_b32 s55, s55, 10
    s_add_u32 s56, s55, {112 * 1024}""")
    nld = [0]
    def ld(ks, u):
        b = BR + 8 * (ks % DEPTH) + 4 * u
        k(f"    buffer_load_dwordx4 v[{b}:{b+3}], v{vL16}, s[36:39], s{55 + u} offen sc1")
        k(f"    s_add_u32 s{55 + u}, s{55 + u}, 1024")
        nld[0] += 1
    for ks in range(LEAD):
        ld(ks, 0); ld(ks, 1)
    pstamp(k, "g2_issue", True)
    k(f"""
    s_lshr_b32 s57, s{sW}, 1
    s_and_b32 s58, s{sW}, 1
    v_and_b32 v8, 31, v1
    v_lshrrev_b32 v9, 5, v1
    s_add_u32 s59, s52, s58
    s_lshl_b32 s59, s59, 5
    v_add_u32 v8, s59, v8
    v_lshlrev_b32 v8, 10, v8
    v_lshlrev_b32 v9, 3, v9
    v_add_u32 v8, v8, v9
    s_lshl_b32 s60, s34, 7
    s_lshl_b32 s61, s57, 6
    s_add_u32 s60, s60, s61""")
    nxt = 2 * LEAD
    for ks in range(28):
        b = BR + 8 * (ks % DEPTH)
        k(f"    s_waitcnt vmcnt({nld[0] - (2 * ks + 2)})")
        nside = 3 if (nxt < 56 and nxt // 2 - ks < DEPTH - 2 and ks < 12) else 2
        m = 0
        for dt in range(2):
            for tt in range(2):
                A = G2ACC + 16 * (2 * dt + tt)
                C = "0" if ks == 0 else f"v[{A}:{A+15}]"
                k(f"    v_mfma_f32_32x32x16_bf16 v[{A}:{A+15}], a[{8*ks+4*dt}:{8*ks+4*dt+3}], v[{b+4*tt}:{b+4*tt+3}], {C}")
                m += 1
                if m <= nside and nxt < 56 and (nxt // 2) - ks < DEPTH:
                    ld(nxt // 2, nxt % 2); nxt += 1
    assert nxt == 56
    pstamp(k, "g2main", True)
    for q in range(4):
        k(f"    buffer_load_dwordx2 v[{16 + 2 * q}:{17 + 2 * q}], v8, s[44:47], s60 offen offset:{16 * q} sc1")
    for o in range(4):
        lab = k.label("g2skip")
        k(f"    s_cmp_eq_u32 s{sW}, {o}")
        k(f"    s_cbranch_scc1 {lab}")
        k(f"    s_sub_u32 s61, s{sW}, {o + 1}")
        k(f"    s_and_b32 s61, s61, 3")
        k(f"    s_lshl_b32 s61, s61, 12")
        k(f"    s_add_u32 s61, s61, {SCR + o * 3 * 4096}")
        k(f"    v_add_u32 v9, s61, v{vL16}")
        k("    s_nop 7")
        for q in range(4):
            A = G2ACC + 16 * o + 4 * q
            k(f"    ds_write_b128 v9, v[{A}:{A+3}] offset:{1024 * q}")
        k(f"{lab}:")
    for o in range(4):
        lab = k.label("g2own")
        k(f"    s_cmp_lg_u32 s{sW}, {o}")
        k(f"    s_cbranch_scc1 {lab}")
        for r in range(0, 16, 2):
            k(f"    v_pk_mul_f32 v[{48 + r}:{49 + r}], v[{G2ACC + 16 * o + r}:{G2ACC + 16 * o + r + 1}], 1.0 op_sel_hi:[1,0]")
        k(f"{lab}:")
    k(f"""    s_mul_i32 s61, s{sW}, {3 * 4096}
    s_add_u32 s61, s61, {SCR}
    v_add_u32 v9, s61, v{vL16}
    s_waitcnt lgkmcnt(0)
    s_barrier""")
    for r in range(3):
        for q in range(4):
            b = 128 + 16 * r + 4 * q
            k(f"    ds_read_b128 v[{b}:{b+3}], v9 offset:{4096 * r + 1024 * q}")
    k("    s_waitcnt vmcnt(0)")
    for q in range(4):
        k(f"    v_lshlrev_b32 v{32 + 4 * q}, 16, v{16 + 2 * q}")
        k(f"    v_and_b32 v{33 + 4 * q}, 0xffff0000, v{16 + 2 * q}")
        k(f"    v_lshlrev_b32 v{34 + 4 * q}, 16, v{17 + 2 * q}")
        k(f"    v_and_b32 v{35 + 4 * q}, 0xffff0000, v{17 + 2 * q}")
    for i in range(0, 16, 2):
        pk(k, "v_pk_add_f32", 48 + i, 48 + i, 32 + i)
    for r in range(3):
        k(f"    s_waitcnt lgkmcnt({4 * (2 - r)})")
        for i in range(0, 16, 2):
            pk(k, "v_pk_add_f32", 48 + i, 48 + i, 128 + 16 * r + i)
    for q in range(4):
        A = 48 + 4 * q
        k(f"    v_cvt_pk_bf16_f32 v{32 + 2 * q}, v{A}, v{A+1}")
        k(f"    v_cvt_pk_bf16_f32 v{33 + 2 * q}, v{A+2}, v{A+3}")
    for q in range(4):
        k(f"    buffer_store_dwordx2 v[{32 + 2 * q}:{33 + 2 * q}], v8, s[48:51], s60 offen offset:{16 * q}")

def pretouch_all(k):
    k(f"""    s_mov_b32 s36, s{WS}
    s_mov_b32 s37, s{WS+1}
    s_mov_b32 s38, 0x3000000
    s_mov_b32 s39, 0x20000
    v_lshlrev_b32 v10, 7, v1
    s_lshl_b32 s34, s{sT}, 2
    s_add_u32 s34, s34, s{sW}
    s_mul_i32 s35, s34, 112
    s_mul_i32 s53, s{sJ}, 7
    s_add_u32 s35, s35, s53
    s_lshl_b32 s35, s35, 10
    s_add_u32 s35, s35, {hex(HS1)}
    v_min_u32 v11, {55 * 128}, v10
    buffer_load_dword v12, v11, s[36:39], s35 offen
    s_lshl_b32 s34, s{sT}, 7
    s_lshl_b32 s35, s{sJ}, 3
    s_add_u32 s34, s34, s35              ; row0
    s_lshl_b32 s35, s34, 10
    s_lshr_b32 s53, s34, 5
    s_lshl_b32 s53, s53, 15
    s_and_b32 s56, s34, 31
    s_lshl_b32 s56, s56, 4
    s_add_u32 s53, s53, s56
    s_add_u32 s53, s53, {hex(XS1)}
    s_add_u32 s56, s35, {hex(X1)}
    s_add_u32 s57, s35, {hex(X2)}
    s_cmp_eq_u32 s{sW}, 1
    s_cselect_b32 s56, s57, s56
    s_cmp_eq_u32 s{sW}, 2
    s_cselect_b32 s56, s53, s56
    v_lshlrev_b32 v11, 9, v1
    s_cselect_b64 vcc, -1, 0
    v_cndmask_b32 v11, v10, v11, vcc
    buffer_load_dword v13, v11, s[36:39], s56 offen""")

def emit_chain_kernel(k, opts=None):
    opts = opts or {}
    name = "chain_kernel"
    kernel_head(k, name)
    guard(k, 256, name + "_done")
    if STAMP["on"]:
        k("    v_mov_b32 v15, 0")
        k(f"    s_mov_b32 s{sPASS}, 0")
        k("    s_memrealtime s[100:101]")
        k("    s_waitcnt lgkmcnt(0)")
        k("    v_writelane_b32 v15, s100, 30")
    pstamp(k, "start")
    load_args(k)
    k(f"""    v_readfirstlane_b32 s{sW}, v0
    s_lshr_b32 s{sW}, s{sW}, 6
    s_getreg_b32 s34, hwreg(HW_REG_XCC_ID, 0, 4)
    s_and_b32 s34, s34, 7
    s_waitcnt lgkmcnt(0)
    s_cmp_lg_u32 s{sW}, 0
    s_cbranch_scc1 chain_tk
    s_lshl_b32 s35, s34, 7
    s_add_u32 s35, s35, {hex(FLAGS + 2048)}
    s_add_u32 s36, s{WS}, s35
    s_addc_u32 s37, s{WS+1}, 0
    s_mov_b32 s38, 128
    s_mov_b32 s39, 0x20000
    v_mov_b32 v6, 1
    v_mov_b32 v7, 0
    s_mov_b64 exec, 1
    buffer_atomic_add v6, v7, s[36:39], 0 offen sc0
    s_waitcnt vmcnt(0)
    v_mov_b32 v7, {LNB}
    ds_write_b32 v7, v6
    s_waitcnt lgkmcnt(0)
    s_mov_b64 exec, -1
chain_tk:
    s_barrier
    v_mov_b32 v7, {LNB}
    ds_read_b32 v6, v7
    s_waitcnt lgkmcnt(0)
    v_readfirstlane_b32 s35, v6
    s_barrier
    s_cmp_ge_u32 s35, 32
    s_cbranch_scc1 {name}_done
    s_lshl_b32 s{sT}, s34, 1
    s_lshr_b32 s{sJ}, s35, 4
    s_add_u32 s{sT}, s{sT}, s{sJ}
    s_and_b32 s{sJ}, s35, 15""")
    k(f"""
    v_and_b32 v1, 63, v0
    v_lshlrev_b32 v{vL16}, 4, v1
    v_add_u32 v{vB2}, {2 * SLOT}, v{vL16}
    v_add_u32 v{vB4}, {4 * SLOT}, v{vL16}
    v_and_b32 v{vFLAG}, 15, v1
    v_lshlrev_b32 v{vFLAG}, 2, v{vFLAG}
    v_mov_b32 v7, 0
    s_mov_b32 s{sEP}, 0
    s_waitcnt lgkmcnt(0)""")
    k(f"""    s_lshl_b32 s34, s{sT}, 7
    s_add_u32 s34, s34, {hex(FLAGS)}
    s_add_u32 s{S_FL}, s{WS}, s34
    s_addc_u32 s{S_FL+1}, s{WS+1}, 0
    s_mov_b32 s{S_FL+2}, 128
    s_mov_b32 s{S_FL+3}, 0x20000""")
    if opts.get("pretouch", True): pretouch_all(k)
    srd(k, 36, Q, S * D * 2)
    srd(k, 40, WS, S * D * 2, YT)
    srd(k, 44, WS, S * D * 2, X1)
    srd(k, 48, WS, S * D * 2, XS1)
    srd(k, 52, WS, S * D * 2, YR)
    emit_ln_stage(k, True)
    pstamp(k, "ln1_done")
    srd(k, 40, WS, 0x380000, W1S)
    srd(k, 48, WS, 0x1C0000, W2S)
    k(f"""    s_mul_i32 s54, s{sJ}, {8 * SLOT}
    s_mul_i32 s55, s{sW}, 7168
    s_add_u32 s54, s54, s55""")
    for p in range(5):
        k(f"    s_add_u32 s53, s54, {p * SLOT}")
        for i in range(7):
            k(f"    s_add_u32 m0, s55, {p * SLOT + 1024 * i}")
            k(f"    buffer_load_dwordx4 v{vL16}, s[40:43], s53 offen {WNT} lds")
            if i < 6: k(f"    s_add_u32 s53, s53, 1024")
    pstamp(k, "w1_issued")
    w2_load(k)
    for p in range(8): k(f"    s_mov_b32 s{72 + p}, {p}")
    k(f"    s_mov_b32 s{sPASS}, 0")
    pstamp(k, "prefetch_issued")
    k("chain_pass:")
    team_barrier(k, "tb")
    pstamp(k, "bar_ln", True)
    srd(k, 36, WS, S * D * 2, XS1)
    srd(k, 40, WS, 0x380000, W1S)
    srd(k, 44, WS, 0x700000, HS1)
    k(f"""    s_mul_i32 s54, s{sJ}, {8 * SLOT}
    s_mul_i32 s55, s{sW}, 7168
    s_add_u32 s54, s54, s55""")
    emit_g1(k)
    pstamp(k, "g1epi", True)
    team_barrier(k, "tb")
    pstamp(k, "bar_g1", True)
    srd(k, 36, WS, 0x700000, HS1)
    srd(k, 44, WS, S * D * 2, X1)
    k(f"    s_cmp_eq_u32 s{sPASS}, 0")
    k(f"    s_cbranch_scc0 chain_o2")
    srd(k, 48, WS, S * D * 2, X2)
    k("    s_branch chain_o3")
    k("chain_o2:")
    srd(k, 48, OUT, S * D * 2)
    k("chain_o3:")
    emit_g2(k)
    pstamp(k, "g2epi", True)
    k(f"    s_cmp_lg_u32 s{sPASS}, 0")
    k(f"    s_cbranch_scc1 chain_done2")
    k("    s_barrier")
    srd(k, 40, WS, 0x380000, W1S)
    k(f"""    s_mul_i32 s54, s{sJ}, {8 * SLOT}
    s_mul_i32 s55, s{sW}, 7168
    s_add_u32 s54, s54, s55
    s_add_u32 s53, s54, {4 * SLOT}""")
    for i in range(7):
        k(f"    s_add_u32 m0, s55, {4 * SLOT + 1024 * i}")
        k(f"    buffer_load_dwordx4 v{vL16}, s[40:43], s53 offen {WNT} lds")
        if i < 6: k(f"    s_add_u32 s53, s53, 1024")
    srd(k, 40, WS, S * D * 2, YR)
    k(f"""    s_lshl_b32 s34, s{sT}, 7
    s_lshl_b32 s35, s{sJ}, 3
    s_add_u32 s32, s34, s35
    s_lshl_b32 s34, s{sW}, 1
    s_add_u32 s34, s34, s32
    s_lshl_b32 s35, s34, 10
    buffer_load_dwordx4 v[88:91], v{vL16}, s[40:43], s35 offen sc1
    buffer_load_dwordx4 v[92:95], v{vL16}, s[40:43], s35 offen offset:1024 sc1""")
    team_barrier(k, "tb")
    pstamp(k, "bar_g2")
    srd(k, 36, WS, S * D * 2, X2)
    srd(k, 44, WS, S * D * 2, X1)
    srd(k, 48, WS, S * D * 2, XS1)
    emit_ln_stage(k, False)
    for p, c in enumerate((5, 6, 7, 3, 4, 0, 1, 2)): k(f"    s_mov_b32 s{72 + p}, {c}")
    k(f"    s_mov_b32 s{sPASS}, 1")
    pstamp(k, "ln2")
    k("    s_branch chain_pass")
    k("chain_done2:")
    if STAMP["on"]:
        k("    s_waitcnt vmcnt(0)")
        pstamp(k, "end")
        k("    s_memrealtime s[100:101]")
        k("    s_waitcnt lgkmcnt(0)")
        k("    v_writelane_b32 v15, s100, 31")
        k(f"""    s_add_u32 s36, s28, 0x3800000
    s_addc_u32 s37, s29, 0
    s_mov_b32 s38, 0x40000
    s_mov_b32 s39, 0x20000
    s_lshl_b32 s40, s2, 10
    v_lshlrev_b32 v1, 2, v0
    buffer_store_dword v15, v1, s[36:39], s40 offen
    s_waitcnt vmcnt(0)""")
        import json; json.dump(STN, open("stn.json", "w"))
    k(name + "_done:")
    k("    s_endpgm")
    kernel_desc(k, name, 512, 102, accum=256)
```

```python
import sys; sys.path.insert(0, "tools")
from asmlib import *

S, D, F = 2048, 512, 1792
Q, KK, VV, SH, SSMK, SSMD, BX, WG, WU, WD, OUT, DBG, WS = 4, 6, 8, 10, 12, 14, 16, 18, 20, 22, 24, 26, 28

URS   = 4224
UR    = 0x0000000
YT    = 0x0400000
W1S   = 0x0800000
W2S   = 0x0C00000
XS1   = 0x1000000
XS2   = 0x1200000
X1    = 0x1400000
X2    = 0x1600000
X3    = 0x1800000
YR    = 0x1A00000
HS1   = 0x2000000
HS2   = 0x2800000
FLAGS = 0x3000000
WS_BYTES = 268435456

def load_args(k):
    k("""    s_load_dwordx16 s[4:19], s[0:1], 0
    s_load_dwordx8 s[20:27], s[0:1], 64
    s_load_dwordx2 s[28:29], s[0:1], 96""")

def srd(k, dst, base, size, add=0):
    if add:
        k(f"    s_add_u32 s{dst}, s{base}, {hex(add)}")
        k(f"    s_addc_u32 s{dst+1}, s{base+1}, 0")
    else:
        k(f"    s_mov_b32 s{dst}, s{base}")
        k(f"    s_mov_b32 s{dst+1}, s{base+1}")
    k(f"    s_mov_b32 s{dst+2}, {hex(size)}")
    k(f"    s_mov_b32 s{dst+3}, 0x20000")

def guard(k, n, lab):
    k(f"    s_cmp_ge_u32 s2, {n}")
    k(f"    s_cbranch_scc1 {lab}")


STAMP = {"on": False, "n": 0}
def stamp(k):
    if not STAMP["on"]: return
    i = STAMP["n"]; STAMP["n"] += 1
    assert i < 20
    k(f"    s_memtime s[100:101]")
    k(f"    s_waitcnt lgkmcnt(0)")
    k(f"    s_mov_b32 s{80 + i}, s100")
def stamp_rt(k):
    if not STAMP["on"]: return
    i = STAMP["n"]; STAMP["n"] += 1
    k(f"    s_memrealtime s[100:101]")
    k(f"    s_waitcnt lgkmcnt(0)")
    k(f"    s_mov_b32 s{80 + i}, s100")
def stamp_reset():
    STAMP["n"] = 0
def stamp_dump(k, slot):
    if not STAMP["on"]: return
    n = STAMP["n"]
    k(f"    s_add_u32 s36, s28, {hex(0x3800000 + slot * 0x10000)}")
    k("    s_addc_u32 s37, s29, 0")
    k("    s_mov_b32 s38, 0x10000")
    k("    s_mov_b32 s39, 0x20000")
    k("    s_lshl_b32 s40, s2, 7")
    k("    v_mov_b32 v0, 0")
    for i in range(n):
        k(f"    v_mov_b32 v1, s{80 + i}")
        k(f"    buffer_store_dword v1, v0, s[36:39], s40 offen offset:{4 * i}")
    k("    s_waitcnt vmcnt(0)")
```

```python
from common import *

UCH = 34048
CS = 4160
HB = 2 * UCH
HCH = 7600
XB = HB + 2 * HCH
XB = (XB + 255) // 256 * 256
CONV_LDS = XB + 4 * 4096

def emit_conv(k, s_cp, pfx, ysc=""):
    srd(k, 36, WS, 0x220000, UR)
    srd(k, 40, SSMK, D * S * 2)
    srd(k, 44, WS, D * S * 2, YT)
    k(f"""
    v_and_b32 v1, 63, v0                 ; lane
    v_readfirstlane_b32 s33, v0
    s_lshr_b32 s33, s33, 6               ; wave
    s_lshr_b32 s34, s33, 1               ; ci
    s_and_b32 s35, s33, 1                ; hf
    s_lshl_b32 s52, s{s_cp}, 1
    s_add_u32 s52, s52, s34              ; channel
    s_lshl_b32 s53, s52, 1
    s_and_b32 s54, s53, 0xfffffffc
    s_load_dword s55, s[{SSMD}:{SSMD+1}], s54
    ; ---- U fill : p = 1040*hf + 64 i + lane ; c = p/260, m = p%260 ; voff = ch*URS + 16 m + 2 c
    s_mul_i32 s56, s52, {URS}
    s_lshl_b32 s57, s35, 3               ; 2*c0 = 8*hf
    s_add_u32 s56, s56, s57              ; soffset
    v_lshlrev_b32 v2, 4, v1
    v_mov_b32 v3, v1                     ; m
    s_mul_i32 s57, s34, {UCH}
    s_mul_i32 s58, s35, {1040 * 16}
    s_add_u32 s57, s57, s58""")
    for i in range(17):
        k(f"    s_add_u32 m0, s57, {1024 * i}")
        k(f"    buffer_load_dwordx4 v2, s[36:39], s56 offen lds")
        if i < 16:
            k(f"""    v_add_u32 v3, 64, v3
    v_cmp_le_u32 vcc, 260, v3
    v_add_u32 v2, 1024, v2
    v_subrev_u32 v4, 260, v3
    v_add_u32 v5, {hex((-4160 + 2) & 0xffffffff)}, v2
    v_cndmask_b32 v3, v3, v4, vcc
    v_cndmask_b32 v2, v2, v5, vcc""")
    k(f"""
    s_lshl_b32 s56, s52, 12              ; ch*4096
    s_lshl_b32 s58, s35, 11              ; hf*2048
    s_add_u32 s56, s56, s58
    v_lshlrev_b32 v2, 4, v1
    buffer_load_dwordx4 v[8:11], v2, s[40:43], s56 offen
    buffer_load_dwordx4 v[12:15], v2, s[40:43], s56 offen offset:1024
    s_mul_i32 s58, s34, {HCH}
    s_add_u32 s58, s58, {HB}
    s_lshl_b32 s59, s35, 7
    v_add_u32 v3, s59, v1
    v_min_u32 v4, 154, v3
    v_lshlrev_b32 v4, 4, v4
    v_add_u32 v4, s58, v4
    v_add_u32 v5, 64, v3
    v_min_u32 v5, 154, v5
    v_lshlrev_b32 v5, 4, v5
    v_add_u32 v5, s58, v5
    v_mov_b32 v16, 0
    v_mov_b32 v17, 0
    v_mov_b32 v18, 0
    v_mov_b32 v19, 0
    ds_write_b128 v4, v[16:19]
    ds_write_b128 v5, v[16:19]
    v_lshrrev_b32 v3, 2, v1
    s_lshl_b32 s59, s35, 5
    s_add_u32 s59, s59, 31
    v_add_u32 v3, s59, v3
    v_mul_u32_u24 v3, 80, v3
    v_and_b32 v4, 3, v1
    v_lshlrev_b32 v4, 4, v4
    v_add_u32 v3, v3, v4
    v_add_u32 v3, s58, v3
    s_waitcnt vmcnt(0)
    ds_write_b128 v3, v[8:11]
    ds_write_b128 v3, v[12:15] offset:1280
    v_and_b32 v2, 31, v1                 ; i / n
    v_lshrrev_b32 v3, 5, v1              ; g
    v_and_b32 v4, 7, v2
    v_sub_u32 v4, 7, v4
    v_mul_u32_u24 v4, {CS}, v4
    v_lshrrev_b32 v5, 3, v2
    v_sub_u32 v5, v3, v5                 ; g - (i>>3)
    v_add_u32 v5, 255, v5
    v_lshlrev_b32 v5, 4, v5
    v_add_u32 v4, v4, v5
    s_mul_i32 s59, s34, {UCH}
    s_lshl_b32 s60, s35, 10              ; 1024*hf
    s_sub_u32 s59, s59, s60
    s_sub_u32 s59, s59, {64 * 47}
    v_add_u32 v6, s59, v4
    v_mul_u32_u24 v4, 80, v2
    v_lshlrev_b32 v5, 4, v3
    v_add_u32 v4, v4, v5
    s_mul_i32 s60, s35, {80 * 16}
    s_sub_u32 s60, s58, s60
    s_add_u32 s60, s60, {80 * 31 - 80 * 15}
    v_add_u32 v7, s60, v4""")
    for r in range(32):
        k(f"    v_accvgpr_write_b32 a{r}, 0")
    k("    s_waitcnt lgkmcnt(0)")
    k("    s_barrier")
    NS = 3
    base = 32
    def reads(n):
        t, kh = n >> 1, n & 1
        b = base + 16 * (n % NS)
        k(f"    ds_read_b128 v[{b}:{b+3}], v6 offset:{64 * (47 - t) + 32 * kh}")
        k(f"    ds_read_b128 v[{b+4}:{b+7}], v7 offset:{80 * (15 - t) + 32 * kh}")
        k(f"    ds_read_b128 v[{b+8}:{b+11}], v7 offset:{80 * (15 - t) + 32 * kh + 2560}")
        k(f"    ds_read_b128 v[{b+12}:{b+15}], v6 offset:{64 * (15 - t) + 32 * kh}")
    reads(0); reads(1)
    for n in range(32):
        if n + 2 < 32: reads(n + 2)
        out = 8 if n + 2 < 32 else (4 if n + 1 < 32 else 0)
        b = base + 16 * (n % NS)
        k(f"    s_waitcnt lgkmcnt({out + 2})")
        k(f"    v_mfma_f32_32x32x16_bf16 a[0:15], v[{b}:{b+3}], v[{b+4}:{b+7}], a[0:15]")
        k(f"    s_waitcnt lgkmcnt({out + 1})")
        k(f"    v_mfma_f32_32x32x16_bf16 a[16:31], v[{b}:{b+3}], v[{b+8}:{b+11}], a[16:31]")
        k(f"    s_waitcnt lgkmcnt({out})")
        k(f"    v_mfma_f32_32x32x16_bf16 a[16:31], v[{b+12}:{b+15}], v[{b+4}:{b+7}], a[16:31]")
    k(f"""
    v_lshlrev_b32 v8, 4, v1
    s_lshl_b32 s59, s33, 12
    s_add_u32 s59, s59, {XB}
    v_add_u32 v9, s59, v8
    s_xor_b32 s60, s33, 1
    s_lshl_b32 s60, s60, 12
    s_add_u32 s60, s60, {XB}
    v_add_u32 v10, s60, v8
    s_cmp_eq_u32 s35, 0
    s_cbranch_scc1 {pfx}_h0""")
    for r in range(16): k(f"    v_accvgpr_read_b32 v{32 + r}, a{r}")
    for r in range(16): k(f"    v_accvgpr_read_b32 v{48 + r}, a{16 + r}")
    k(f"    s_branch {pfx}_x")
    k(f"{pfx}_h0:")
    k("    s_nop 7")
    for r in range(16): k(f"    v_accvgpr_read_b32 v{32 + r}, a{16 + r}")
    for r in range(16): k(f"    v_accvgpr_read_b32 v{48 + r}, a{r}")
    k(f"{pfx}_x:")
    for q in range(4):
        k(f"    ds_write_b128 v9, v[{32 + 4 * q}:{35 + 4 * q}] offset:{1024 * q}")
    k(f"""
    v_lshlrev_b32 v11, 5, v2             ; 32 n
    v_lshlrev_b32 v12, 2, v3             ; 4 hi
    v_add_u32 v11, v11, v12
    s_lshl_b32 s59, s35, 10
    v_add_u32 v11, s59, v11              ; t0 (q=0)
    v_lshlrev_b32 v12, 1, v11            ; 2*t0
    s_mul_i32 s60, s34, {UCH}
    s_add_u32 s60, s60, {2 * 2044 - 48}
    v_sub_u32 v13, s60, v12
    ds_read_b64 v[16:17], v13 offset:48
    ds_read_b64 v[18:19], v13 offset:32
    ds_read_b64 v[20:21], v13 offset:16
    ds_read_b64 v[22:23], v13 offset:0
    s_waitcnt lgkmcnt(0)
    s_barrier""")
    for q in range(4):
        k(f"    ds_read_b128 v[{32 + 4 * q}:{35 + 4 * q}], v10 offset:{1024 * q}")
    k(f"""
    s_and_b32 s59, s52, 1
    s_lshl_b32 s59, s59, 4
    s_lshr_b32 s55, s55, s59
    s_lshl_b32 s55, s55, 16
    s_lshl_b32 s56, s52, 12
    s_waitcnt lgkmcnt(0)""")
    for q in range(4):
        u0, u1 = 16 + 2 * q, 17 + 2 * q
        A = 48 + 4 * q; P = 32 + 4 * q
        k(f"""    v_add_f32 v{A}, v{A}, v{P}
    v_add_f32 v{A+1}, v{A+1}, v{P+1}
    v_add_f32 v{A+2}, v{A+2}, v{P+2}
    v_add_f32 v{A+3}, v{A+3}, v{P+3}
    v_and_b32 v24, 0xffff0000, v{u1}
    v_lshlrev_b32 v25, 16, v{u1}
    v_and_b32 v26, 0xffff0000, v{u0}
    v_lshlrev_b32 v27, 16, v{u0}
    v_fmac_f32 v{A}, s55, v24
    v_fmac_f32 v{A+1}, s55, v25
    v_fmac_f32 v{A+2}, s55, v26
    v_fmac_f32 v{A+3}, s55, v27
    v_cvt_pk_bf16_f32 v{64 + 2 * q}, v{A}, v{A+1}
    v_cvt_pk_bf16_f32 v{65 + 2 * q}, v{A+2}, v{A+3}""")
    for q in range(4):
        k(f"    buffer_store_dwordx2 v[{64 + 2 * q}:{65 + 2 * q}], v12, s[44:47], s56 offen offset:{16 * q} {ysc}")

def emit_conv_kernel(k):
    kernel_head(k, "conv_kernel")
    guard(k, 256, "conv_done")
    load_args(k)
    k("    s_waitcnt lgkmcnt(0)")
    k("    s_mov_b32 s30, s2")
    k(f"""    s_cmp_lg_u32 s2, 0
    s_cbranch_scc1 conv_nz
    s_add_u32 s36, s{WS}, {hex(FLAGS)}
    s_addc_u32 s37, s{WS+1}, 0
    s_mov_b32 s38, 4096
    s_mov_b32 s39, 0x20000
    v_lshlrev_b32 v1, 4, v0
    v_mov_b32 v4, 0
    v_mov_b32 v5, 0
    v_mov_b32 v6, 0
    v_mov_b32 v7, 0
    buffer_store_dwordx4 v[4:7], v1, s[36:39], 0 offen
conv_nz:""")
    emit_conv(k, 30, "conv")
    k("conv_done:")
    k("    s_endpgm")
    kernel_desc(k, "conv_kernel", 96 + 32, 64, accum=96)
```

```python
from common import *

def dpp_reduce(k, regs):
    for mod in ("row_shr:1 row_mask:0xf bank_mask:0xf", "row_shr:2 row_mask:0xf bank_mask:0xf", "row_shr:4 row_mask:0xf bank_mask:0xf",
                "row_shr:8 row_mask:0xf bank_mask:0xf", "row_bcast:15 row_mask:0xa bank_mask:0xf", "row_bcast:31 row_mask:0xc bank_mask:0xf"):
        for r in regs:
            k(f"    v_add_f32_dpp v{r}, v{r}, v{r} {mod}")

def pk(k, op, d, a_, b_, c_=None, mods=""):
    def f(x):
        return x if isinstance(x, str) else f"v[{x}:{x+1}]"
    if c_ is None: k(f"    {op} {f(d)}, {f(a_)}, {f(b_)} {mods}")
    else: k(f"    {op} {f(d)}, {f(a_)}, {f(b_)}, {f(c_)} {mods}")

def unpack8(k, dst, src):
    for d in range(4):
        k(f"    v_lshlrev_b32 v{dst + 2 * d}, 16, v{src + d}")
        k(f"    v_and_b32 v{dst + 2 * d + 1}, 0xffff0000, v{src + d}")

def ln2rows(k, xa, xb, da, db, tmp, sb):
    rows = ((xa, da, tmp, sb), (xb, db, tmp + 4, sb + 2))
    for (x, d, t, s_) in rows:
        k(f"    v_readfirstlane_b32 s{s_}, v{x}")
    for (x, d, t, s_) in rows:
        for p in range(4):
            pk(k, "v_pk_add_f32", d + 2 * p, x + 2 * p, f"s[{s_}:{s_+1}]", mods="op_sel_hi:[1,0] neg_lo:[0,1] neg_hi:[0,1]")
    for (x, d, t, s_) in rows:
        pk(k, "v_pk_add_f32", t, d, d + 2)
        pk(k, "v_pk_mul_f32", t + 2, d, d)
    for (x, d, t, s_) in rows:
        pk(k, "v_pk_add_f32", t, t, d + 4)
        pk(k, "v_pk_fma_f32", t + 2, d + 2, d + 2, t + 2)
    for (x, d, t, s_) in rows:
        pk(k, "v_pk_add_f32", t, t, d + 6)
        pk(k, "v_pk_fma_f32", t + 2, d + 4, d + 4, t + 2)
    for (x, d, t, s_) in rows:
        pk(k, "v_pk_fma_f32", t + 2, d + 6, d + 6, t + 2)
        k(f"    v_add_f32 v{t}, v{t}, v{t+1}")
    for (x, d, t, s_) in rows:
        k(f"    v_add_f32 v{t+2}, v{t+2}, v{t+3}")
    dpp_reduce(k, [tmp, tmp + 2, tmp + 4, tmp + 6])
    for i, r in enumerate((tmp, tmp + 2, tmp + 4, tmp + 6)):
        k(f"    v_readlane_b32 s{sb + 4 + i}, v{r}, 63")
    for i, (x, d, t, s_) in enumerate(rows):
        k(f"    v_mov_b32 v{t}, s{sb + 4 + 2 * i}")
        k(f"    v_mov_b32 v{t+2}, s{sb + 5 + 2 * i}")
    for (x, d, t, s_) in rows:
        k(f"    v_mul_f32 v{t}, 0x3b000000, v{t}")
        k(f"    v_mul_f32 v{t+2}, 0x3b000000, v{t+2}")
    for (x, d, t, s_) in rows:
        k(f"    v_fma_f32 v{t+2}, -v{t}, v{t}, v{t+2}")
    for (x, d, t, s_) in rows:
        k(f"    v_max_f32 v{t+2}, 0, v{t+2}")
    for (x, d, t, s_) in rows:
        k(f"    v_add_f32 v{t+2}, 0x3727c5ac, v{t+2}")
    for (x, d, t, s_) in rows:
        k(f"    v_rsq_f32 v{t+2}, v{t+2}")
    for (x, d, t, s_) in rows:
        k(f"    v_mul_f32 v{t}, v{t}, v{t+2}")
    for (x, d, t, s_) in rows:
        for p in range(4):
            k(f"    v_pk_fma_f32 v[{d+2*p}:{d+2*p+1}], v[{d+2*p}:{d+2*p+1}], v[{t+2}:{t+3}], v[{t}:{t+1}] op_sel_hi:[1,0,0] neg_lo:[0,0,1] neg_hi:[0,0,1]")
```

```python
from common import *
from pre import *
from conv import *
from chain3 import *
hdr = open("interleave_layers__ssm_conv_h3__glu_gated_geglu__prompt.s.ref").read().split("\n")
if "--stamp" in sys.argv: STAMP["on"] = True
k = K()
for ln in hdr:
    if ln.startswith("; Kernarg") or ln.startswith(";   offset"): k(ln)
k("; @launch kernel=pre_kernel grid=(448,1,1) block=(256,1,1) lds=29184")
k(f"; @launch kernel=conv_kernel grid=(256,1,1) block=(256,1,1) lds={CONV_LDS}")
k(f"; @launch kernel=chain_kernel grid=(256,1,1) block=(256,1,1) lds={CHAIN_LDS}")
k('.amdgcn_target "amdgcn-amd-amdhsa--gfx950"')
emit_pre_kernel(k)
emit_conv_kernel(k)
emit_chain_kernel(k)
out = sys.argv[1] if len(sys.argv) > 1 else "v3.s"
open(out, "w").write(k.text())
```

```python
from common import *
from ln import team_member
from ln2 import *

import os
WNT = os.environ.get("WNT", "")
W2NT = os.environ.get("W2NT", "")
SLOT = 28672
SCR = 4 * SLOT
LNB = 5 * SLOT
CHAIN_LDS = 163840

sT, sJ, sW, sPASS, sEP = 30, 31, 33, 70, 71
S_FL = 64
vL16, vB2, vB4, vFLAG = 2, 3, 4, 5

NST = [0]
STN = {}
def pstamp(k, name, per_pass=False):
    if not STAMP["on"]: return
    idx = NST[0]; NST[0] += 1
    STN[idx] = (name, per_pass)
    k("    s_memtime s[100:101]")
    k("    s_waitcnt lgkmcnt(0)")
    if per_pass:
        k(f"    s_lshl_b32 s99, s{sPASS}, 5")
        k(f"    s_add_u32 m0, s99, {idx}")
        k(f"    v_writelane_b32 v15, s100, m0")
    else:
        k(f"    v_writelane_b32 v15, s100, {idx}")

def team_barrier(k, pfx):
    lab = k.label(pfx)
    k(f"""    s_waitcnt vmcnt(0)
    s_barrier
    s_add_u32 s{sEP}, s{sEP}, 1
    s_cmp_lg_u32 s{sW}, 0
    s_cbranch_scc1 {lab}_w
    v_mov_b32 v6, s{sEP}
    s_lshl_b32 s68, s{sJ}, 2
    s_mov_b64 exec, 1
    buffer_store_dword v6, v7, s[{S_FL}:{S_FL+3}], s68 offen
    s_mov_b64 exec, -1
    s_mov_b32 s69, 0
{lab}_p:
    buffer_load_dword v6, v{vFLAG}, s[{S_FL}:{S_FL+3}], 0 offen sc1
    s_add_u32 s69, s69, 1
    s_cmp_gt_u32 s69, 200000
    s_cbranch_scc1 {lab}_w
    s_waitcnt vmcnt(0)
    v_cmp_gt_u32 vcc, s{sEP}, v6
    s_cmp_lg_u64 vcc, 0
    s_cbranch_scc1 {lab}_p
{lab}_w:
    s_barrier""")

def touch(k, srd_, s_off, nlines_log2_per_lane=7):
    k(f"    v_lshlrev_b32 v10, 7, v1")
    k(f"    buffer_load_dword v11, v10, s[{srd_}:{srd_+3}], s{s_off} offen")

FIRST_SC1 = os.environ.get("FSC1", "1") == "1"
def emit_ln_stage(k, first, hook=None):
    st1 = ""
    sty = "sc1" if first else ""
    PX, PY = 80, 88
    k(f"""
    s_lshl_b32 s34, s{sT}, 7
    s_lshl_b32 s35, s{sJ}, 3
    s_add_u32 s32, s34, s35
    s_lshl_b32 s34, s{sW}, 1
    s_add_u32 s34, s34, s32
    s_lshl_b32 s35, s34, 10""")
    ld = "" if first else "sc1"
    k(f"    buffer_load_dwordx4 v[{PX}:{PX+3}], v{vL16}, s[36:39], s35 offen {ld}")
    k(f"    buffer_load_dwordx4 v[{PX+4}:{PX+7}], v{vL16}, s[36:39], s35 offen offset:1024 {ld}")
    if first:
        k(f"""    v_lshlrev_b32 v24, 13, v0
    s_lshl_b32 s56, s32, 1
    buffer_load_dwordx4 v[16:19], v24, s[40:43], s56 offen
    v_add_u32 v24, 4096, v24
    buffer_load_dwordx4 v[20:23], v24, s[40:43], s56 offen
    s_mov_b32 s57, 0x05040100
    s_mov_b32 s58, 0x07060302
    v_lshlrev_b32 v25, 2, v0
    v_add_u32 v25, {LNB}, v25""")
        if hook: hook(k)
        else: k("    s_waitcnt vmcnt(0)")
        pstamp(k, "ln1_loads")
        for e in range(8):
            k(f"    v_perm_b32 v{26 + (e & 1)}, v{20 + (e >> 1)}, v{16 + (e >> 1)}, s{57 + (e & 1)}")
            k(f"    ds_write_b32 v25, v{26 + (e & 1)} offset:{1024 * e}")
        unpack8(k, 32, PX); unpack8(k, 40, PX + 4)
        k(f"""    s_lshl_b32 s56, s{sW}, 11
    s_add_u32 s56, s56, {LNB}
    v_add_u32 v25, s56, v{vL16}
    s_waitcnt lgkmcnt(0)
    s_barrier
    ds_read_b128 v[{PY}:{PY+3}], v25
    ds_read_b128 v[{PY+4}:{PY+7}], v25 offset:1024""")
        ln2rows(k, 32, 40, 48, 56, 16, 56)
        k("    s_waitcnt lgkmcnt(0)")
        k(f"    buffer_store_dwordx4 v[{PY}:{PY+3}], v{vL16}, s[52:55], s35 offen {sty}")
        k(f"    buffer_store_dwordx4 v[{PY+4}:{PY+7}], v{vL16}, s[52:55], s35 offen offset:1024 {sty}")
    else:
        k("    s_waitcnt vmcnt(0)")
        unpack8(k, 32, PX); unpack8(k, 40, PX + 4)
        ln2rows(k, 32, 40, 48, 56, 16, 56)
    unpack8(k, 64, PY); unpack8(k, 72, PY + 4)
    for p in range(4):
        pk(k, "v_pk_fma_f32", 32 + 2 * p, 48 + 2 * p, 64 + 2 * p, 32 + 2 * p)
        pk(k, "v_pk_fma_f32", 40 + 2 * p, 56 + 2 * p, 72 + 2 * p, 40 + 2 * p)
    for d in range(4):
        k(f"    v_cvt_pk_bf16_f32 v{PX+d}, v{32+2*d}, v{33+2*d}")
        k(f"    v_cvt_pk_bf16_f32 v{PX+4+d}, v{40+2*d}, v{41+2*d}")
    k(f"    buffer_store_dwordx4 v[{PX}:{PX+3}], v{vL16}, s[44:47], s35 offen {st1}")
    k(f"    buffer_store_dwordx4 v[{PX+4}:{PX+7}], v{vL16}, s[44:47], s35 offen offset:1024 {st1}")
    unpack8(k, 32, PX); unpack8(k, 40, PX + 4)
    ln2rows(k, 32, 40, 48, 56, 16, 56)
    for d in range(4):
        k(f"    v_cvt_pk_bf16_f32 v{24+d}, v{48+2*d}, v{49+2*d}")
        k(f"    v_cvt_pk_bf16_f32 v{28+d}, v{56+2*d}, v{57+2*d}")
    k(f"""    s_lshr_b32 s56, s34, 5
    s_lshl_b32 s56, s56, 15
    s_and_b32 s57, s34, 31
    s_lshl_b32 s57, s57, 4
    s_add_u32 s56, s56, s57
    v_lshrrev_b32 v16, 1, v1
    v_lshlrev_b32 v16, 10, v16
    v_and_b32 v17, 1, v1
    v_lshlrev_b32 v17, 9, v17
    v_add_u32 v16, v16, v17
    buffer_store_dwordx4 v[24:27], v16, s[48:51], s56 offen {st1}
    buffer_store_dwordx4 v[28:31], v16, s[48:51], s56 offen offset:16 {st1}""")

ACC, XR, RING = 16, 128, 224

class Sched:
    def __init__(self): self.at = {}
    def add(self, pos, lines): self.at.setdefault(pos, []).extend(lines)
    def emit(self, k, pos):
        for ln in self.at.pop(pos, []): k(ln)

def emit_g1(k, pretouch=False):
    k(f"""
    s_lshl_b32 s34, s{sT}, 2
    s_add_u32 s34, s34, s{sW}
    s_lshl_b32 s52, s34, 15""")
    issued = []
    def xl(p):
        out = []
        for ks in range(4):
            r = XR + 16 * p + 4 * ks
            pre = [f"    s_lshl_b32 s53, s{72 + p}, 12", f"    s_add_u32 s53, s53, s52"] if ks == 0 else []
            out.append((f"x{p}", pre + [f"    buffer_load_dwordx4 v[{r}:{r+3}], v{vL16}, s[36:39], s53 offen offset:{1024 * ks} sc1"]))
        return out
    def wl(p):
        out = []
        for i in range(7):
            pre = [f"    s_mul_i32 s60, s{72 + p}, {SLOT}", "    s_add_u32 s60, s60, s54"] if i == 0 else ["    s_add_u32 s60, s60, 1024"]
            out.append((f"w{p}", pre + [f"    s_add_u32 m0, s55, {(p % 5) * SLOT + 1024 * i}",
                                         f"    buffer_load_dwordx4 v{vL16}, s[40:43], s60 offen {WNT} lds"]))
        return out
    def emit_now(lst):
        for tag, lines in lst:
            for ln in lines: k(ln)
            issued.append(tag)
    issued.extend(["w4"] * 0)
    emit_now(xl(0)); emit_now(xl(1))
    pstamp(k, "g1_issue", True)
    side = {0: xl(2), 1: xl(3), 2: xl(4) + wl(5), 3: xl(5) + wl(6), 4: xl(6) + wl(7), 5: xl(7)}
    def need(p):
        last = max(i for i, t in enumerate(issued) if t in (f"x{p}", f"w{p}"))
        return len(issued) - 1 - last
    PD, NF = 5, 224
    pending = []
    def read(n):
        p, rem = divmod(n, 28)
        if rem == 0:
            assert not [e for e in pending if e[1][0] in (f"x{p}", f"w{p}")], "load not issued before its barrier"
            k(f"    s_waitcnt vmcnt({need(p)})")
            k("    s_barrier")
            pstamp(k, f"g1_B{p}", True)
            lst = side.get(p, [])
            base = max(n - PD, 0)
            for i, e in enumerate(lst):
                pending.append((base + 1 + (i * 24) // max(len(lst), 1), e))
        b = RING + 4 * (n % 8)
        sl = p % 5
        base = vL16 if sl < 2 else (vB2 if sl < 4 else vB4)
        off = (sl % 2 if sl < 4 else 0) * SLOT + rem * 1024
        k(f"    ds_read_b128 a[{b}:{b+3}], v{base} offset:{off}")
    for n in range(PD): read(n)
    for n in range(NF):
        if n + PD < NF: read(n + PD)
        out = min(PD, NF - 1 - n)
        p, rem = divmod(n, 28)
        ks, j = divmod(rem, 7)
        b = RING + 4 * (n % 8)
        B = XR + 16 * p + 4 * ks
        A = ACC + 16 * j
        k(f"    s_waitcnt lgkmcnt({out})")
        C = "0" if (p == 0 and ks == 0) else f"v[{A}:{A+15}]"
        k(f"    v_mfma_f32_32x32x16_bf16 v[{A}:{A+15}], a[{b}:{b+3}], v[{B}:{B+3}], {C}")
        while pending and pending[0][0] <= n:
            _, e = pending.pop(0)
            emit_now([e])
    assert not pending
    pstamp(k, "g1main", True)
    k(f"""
    s_mov_b32 s56, 0xbdd2d3e8
    s_mov_b32 s57, 0xbdd2d3e8
    v_mov_b32 v8, 0xc0135761
    v_mov_b32 v9, 0xc0135761
    s_mul_i32 s58, s34, 112
    s_mul_i32 s59, s{sJ}, 7
    s_add_u32 s58, s58, s59
    s_lshl_b32 s58, s58, 10""")
    for j in range(7):
        A = ACC + 16 * j
        T = 128 + 16 * (j & 1)
        for d in range(4): k(f"    v_pk_mul_f32 v[{T+2*d}:{T+2*d+1}], v[{A+2*d}:{A+2*d+1}], v[{A+2*d}:{A+2*d+1}]")
        for d in range(4): k(f"    v_pk_fma_f32 v[{T+2*d}:{T+2*d+1}], v[{T+2*d}:{T+2*d+1}], s[56:57], v[8:9]")
        for d in range(4): k(f"    v_pk_mul_f32 v[{T+2*d}:{T+2*d+1}], v[{T+2*d}:{T+2*d+1}], v[{A+2*d}:{A+2*d+1}]")
        for e in range(8): k(f"    v_exp_f32 v{T+e}, v{T+e}")
        for d in range(4): k(f"    v_pk_mul_f32 v[{A+2*d}:{A+2*d+1}], v[{A+2*d}:{A+2*d+1}], v[{A+8+2*d}:{A+8+2*d+1}]")
        for d in range(4): k(f"    v_pk_add_f32 v[{T+2*d}:{T+2*d+1}], v[{T+2*d}:{T+2*d+1}], 1.0 op_sel_hi:[1,0]")
        for e in range(8): k(f"    v_rcp_f32 v{T+e}, v{T+e}")
        for d in range(4): k(f"    v_pk_mul_f32 v[{A+2*d}:{A+2*d+1}], v[{A+2*d}:{A+2*d+1}], v[{T+2*d}:{T+2*d+1}]")
        for d in range(4): k(f"    v_cvt_pk_bf16_f32 v{T+8+d}, v{A+2*d}, v{A+2*d+1}")
        k(f"    buffer_store_dwordx4 v[{T+8}:{T+11}], v{vL16}, s[44:47], s58 offen")
        if j < 6: k("    s_add_u32 s58, s58, 1024")

def w2_load(k):
    k(f"""    s_and_b32 s34, s{sJ}, 7
    s_mul_i32 s53, s34, 112
    s_mul_i32 s35, s{sW}, 28
    s_add_u32 s53, s53, s35
    s_lshl_b32 s53, s53, 11""")
    for ks in range(28):
        k(f"    buffer_load_dwordx4 a[{8*ks}:{8*ks+3}], v{vL16}, s[48:51], s53 offen {W2NT}")
        k(f"    buffer_load_dwordx4 a[{8*ks+4}:{8*ks+7}], v{vL16}, s[48:51], s53 offen offset:1024 {W2NT}")
        if ks < 27: k("    s_add_u32 s53, s53, 2048")

def emit_g2(k):
    G2ACC = 64; BR = 128; DEPTH = 16; LEAD = 5
    k(f"""
    s_and_b32 s34, s{sJ}, 7              ; dp
    s_lshr_b32 s35, s{sJ}, 3
    s_lshl_b32 s52, s{sT}, 2
    s_lshl_b32 s35, s35, 1
    s_add_u32 s52, s52, s35
    s_mul_i32 s55, s52, 112
    s_mul_i32 s53, s{sW}, 28
    s_add_u32 s55, s55, s53
    s_lshl_b32 s55, s55, 10
    s_add_u32 s56, s55, {112 * 1024}""")
    nld = [0]
    def ld(ks, u):
        b = BR + 8 * (ks % DEPTH) + 4 * u
        k(f"    buffer_load_dwordx4 v[{b}:{b+3}], v{vL16}, s[36:39], s{55 + u} offen sc1")
        k(f"    s_add_u32 s{55 + u}, s{55 + u}, 1024")
        nld[0] += 1
    for ks in range(LEAD):
        ld(ks, 0); ld(ks, 1)
    pstamp(k, "g2_issue", True)
    k(f"""
    s_lshr_b32 s57, s{sW}, 1
    s_and_b32 s58, s{sW}, 1
    v_and_b32 v8, 31, v1
    v_lshrrev_b32 v9, 5, v1
    s_add_u32 s59, s52, s58
    s_lshl_b32 s59, s59, 5
    v_add_u32 v8, s59, v8
    v_lshlrev_b32 v8, 10, v8
    v_lshlrev_b32 v9, 3, v9
    v_add_u32 v8, v8, v9
    s_lshl_b32 s60, s34, 7
    s_lshl_b32 s61, s57, 6
    s_add_u32 s60, s60, s61""")
    nxt = 2 * LEAD
    for ks in range(28):
        b = BR + 8 * (ks % DEPTH)
        k(f"    s_waitcnt vmcnt({nld[0] - (2 * ks + 2)})")
        nside = 3 if (nxt < 56 and nxt // 2 - ks < DEPTH - 2 and ks < 12) else 2
        m = 0
        for dt in range(2):
            for tt in range(2):
                A = G2ACC + 16 * (2 * dt + tt)
                C = "0" if ks == 0 else f"v[{A}:{A+15}]"
                k(f"    v_mfma_f32_32x32x16_bf16 v[{A}:{A+15}], a[{8*ks+4*dt}:{8*ks+4*dt+3}], v[{b+4*tt}:{b+4*tt+3}], {C}")
                m += 1
                if m <= nside and nxt < 56 and (nxt // 2) - ks < DEPTH:
                    ld(nxt // 2, nxt % 2); nxt += 1
    assert nxt == 56
    pstamp(k, "g2main", True)
    for q in range(4):
        k(f"    buffer_load_dwordx2 v[{16 + 2 * q}:{17 + 2 * q}], v8, s[44:47], s60 offen offset:{16 * q} sc1")
    for o in range(4):
        lab = k.label("g2skip")
        k(f"    s_cmp_eq_u32 s{sW}, {o}")
        k(f"    s_cbranch_scc1 {lab}")
        k(f"    s_sub_u32 s61, s{sW}, {o + 1}")
        k(f"    s_and_b32 s61, s61, 3")
        k(f"    s_lshl_b32 s61, s61, 12")
        k(f"    s_add_u32 s61, s61, {SCR + o * 3 * 4096}")
        k(f"    v_add_u32 v9, s61, v{vL16}")
        k("    s_nop 7")
        for q in range(4):
            A = G2ACC + 16 * o + 4 * q
            k(f"    ds_write_b128 v9, v[{A}:{A+3}] offset:{1024 * q}")
        k(f"{lab}:")
    for o in range(4):
        lab = k.label("g2own")
        k(f"    s_cmp_lg_u32 s{sW}, {o}")
        k(f"    s_cbranch_scc1 {lab}")
        for r in range(0, 16, 2):
            k(f"    v_pk_mul_f32 v[{48 + r}:{49 + r}], v[{G2ACC + 16 * o + r}:{G2ACC + 16 * o + r + 1}], 1.0 op_sel_hi:[1,0]")
        k(f"{lab}:")
    k(f"""    s_mul_i32 s61, s{sW}, {3 * 4096}
    s_add_u32 s61, s61, {SCR}
    v_add_u32 v9, s61, v{vL16}
    s_waitcnt lgkmcnt(0)
    s_barrier""")
    for r in range(3):
        for q in range(4):
            b = 128 + 16 * r + 4 * q
            k(f"    ds_read_b128 v[{b}:{b+3}], v9 offset:{4096 * r + 1024 * q}")
    k("    s_waitcnt vmcnt(0)")
    for q in range(4):
        k(f"    v_lshlrev_b32 v{32 + 4 * q}, 16, v{16 + 2 * q}")
        k(f"    v_and_b32 v{33 + 4 * q}, 0xffff0000, v{16 + 2 * q}")
        k(f"    v_lshlrev_b32 v{34 + 4 * q}, 16, v{17 + 2 * q}")
        k(f"    v_and_b32 v{35 + 4 * q}, 0xffff0000, v{17 + 2 * q}")
    for i in range(0, 16, 2):
        pk(k, "v_pk_add_f32", 48 + i, 48 + i, 32 + i)
    for r in range(3):
        k(f"    s_waitcnt lgkmcnt({4 * (2 - r)})")
        for i in range(0, 16, 2):
            pk(k, "v_pk_add_f32", 48 + i, 48 + i, 128 + 16 * r + i)
    for q in range(4):
        A = 48 + 4 * q
        k(f"    v_cvt_pk_bf16_f32 v{32 + 2 * q}, v{A}, v{A+1}")
        k(f"    v_cvt_pk_bf16_f32 v{33 + 2 * q}, v{A+2}, v{A+3}")
    if False:
        l1, l2 = k.label("g2st"), k.label("g2st")
        k(f"    s_cmp_eq_u32 s{sPASS}, 0")
        k(f"    s_cbranch_scc0 {l1}")
        for q in range(4):
            k(f"    buffer_store_dwordx2 v[{32 + 2 * q}:{33 + 2 * q}], v8, s[48:51], s60 offen offset:{16 * q} sc1")
        k(f"    s_branch {l2}")
        k(f"{l1}:")
    for q in range(4):
        k(f"    buffer_store_dwordx2 v[{32 + 2 * q}:{33 + 2 * q}], v8, s[48:51], s60 offen offset:{16 * q}")
    if False: k(f"{l2}:")

def pretouch_all(k):
    k(f"""    s_mov_b32 s36, s{WS}
    s_mov_b32 s37, s{WS+1}
    s_mov_b32 s38, 0x3000000
    s_mov_b32 s39, 0x20000
    v_lshlrev_b32 v10, 7, v1
    s_lshl_b32 s34, s{sT}, 2
    s_add_u32 s34, s34, s{sW}
    s_mul_i32 s35, s34, 112
    s_mul_i32 s53, s{sJ}, 7
    s_add_u32 s35, s35, s53
    s_lshl_b32 s35, s35, 10
    s_add_u32 s35, s35, {hex(HS1)}
    v_min_u32 v11, {55 * 128}, v10
    buffer_load_dword v12, v11, s[36:39], s35 offen
    s_lshl_b32 s34, s{sT}, 7
    s_lshl_b32 s35, s{sJ}, 3
    s_add_u32 s34, s34, s35              ; row0
    s_lshl_b32 s35, s34, 10
    s_lshr_b32 s53, s34, 5
    s_lshl_b32 s53, s53, 15
    s_and_b32 s56, s34, 31
    s_lshl_b32 s56, s56, 4
    s_add_u32 s53, s53, s56
    s_add_u32 s53, s53, {hex(XS1)}
    s_add_u32 s56, s35, {hex(X1)}
    s_add_u32 s57, s35, {hex(X2)}
    s_cmp_eq_u32 s{sW}, 1
    s_cselect_b32 s56, s57, s56
    s_cmp_eq_u32 s{sW}, 2
    s_cselect_b32 s56, s53, s56
    v_lshlrev_b32 v11, 9, v1
    s_cselect_b64 vcc, -1, 0
    v_cndmask_b32 v11, v10, v11, vcc
    buffer_load_dword v13, v11, s[36:39], s56 offen""")

def emit_chain_kernel(k, opts=None):
    opts = opts or {}
    name = "chain_kernel"
    kernel_head(k, name)
    guard(k, 256, name + "_done")
    if STAMP["on"]:
        k("    v_mov_b32 v15, 0")
        k(f"    s_mov_b32 s{sPASS}, 0")
        k("    s_memrealtime s[100:101]")
        k("    s_waitcnt lgkmcnt(0)")
        k("    v_writelane_b32 v15, s100, 30")
    pstamp(k, "start")
    load_args(k)
    k(f"""    v_readfirstlane_b32 s{sW}, v0
    s_lshr_b32 s{sW}, s{sW}, 6
    s_getreg_b32 s34, hwreg(HW_REG_XCC_ID, 0, 4)
    s_and_b32 s34, s34, 7
    s_waitcnt lgkmcnt(0)
    s_cmp_lg_u32 s{sW}, 0
    s_cbranch_scc1 chain_tk
    s_lshl_b32 s35, s34, 7
    s_add_u32 s35, s35, {hex(FLAGS + 2048)}
    s_add_u32 s36, s{WS}, s35
    s_addc_u32 s37, s{WS+1}, 0
    s_mov_b32 s38, 128
    s_mov_b32 s39, 0x20000
    v_mov_b32 v6, 1
    v_mov_b32 v7, 0
    s_mov_b64 exec, 1
    buffer_atomic_add v6, v7, s[36:39], 0 offen sc0
    s_waitcnt vmcnt(0)
    v_mov_b32 v7, {LNB}
    ds_write_b32 v7, v6
    s_waitcnt lgkmcnt(0)
    s_mov_b64 exec, -1
chain_tk:
    s_barrier
    v_mov_b32 v7, {LNB}
    ds_read_b32 v6, v7
    s_waitcnt lgkmcnt(0)
    v_readfirstlane_b32 s35, v6
    s_barrier
    s_cmp_ge_u32 s35, 32
    s_cbranch_scc1 {name}_done
    s_lshl_b32 s{sT}, s34, 1
    s_lshr_b32 s{sJ}, s35, 4
    s_add_u32 s{sT}, s{sT}, s{sJ}
    s_and_b32 s{sJ}, s35, 15""")
    k(f"""
    v_and_b32 v1, 63, v0
    v_lshlrev_b32 v{vL16}, 4, v1
    v_add_u32 v{vB2}, {2 * SLOT}, v{vL16}
    v_add_u32 v{vB4}, {4 * SLOT}, v{vL16}
    v_and_b32 v{vFLAG}, 15, v1
    v_lshlrev_b32 v{vFLAG}, 2, v{vFLAG}
    v_mov_b32 v7, 0
    s_mov_b32 s{sEP}, 0
    s_waitcnt lgkmcnt(0)""")
    k(f"""    s_lshl_b32 s34, s{sT}, 7
    s_add_u32 s34, s34, {hex(FLAGS)}
    s_add_u32 s{S_FL}, s{WS}, s34
    s_addc_u32 s{S_FL+1}, s{WS+1}, 0
    s_mov_b32 s{S_FL+2}, 128
    s_mov_b32 s{S_FL+3}, 0x20000""")
    if opts.get("pretouch", True): pretouch_all(k)
    srd(k, 36, Q, S * D * 2)
    srd(k, 40, WS, S * D * 2, YT)
    srd(k, 44, WS, S * D * 2, X1)
    srd(k, 48, WS, S * D * 2, XS1)
    srd(k, 52, WS, S * D * 2, YR)
    emit_ln_stage(k, True)
    pstamp(k, "ln1_done")
    srd(k, 40, WS, 0x380000, W1S)
    srd(k, 48, WS, 0x1C0000, W2S)
    k(f"""    s_mul_i32 s54, s{sJ}, {8 * SLOT}
    s_mul_i32 s55, s{sW}, 7168
    s_add_u32 s54, s54, s55""")
    for p in range(5):
        k(f"    s_add_u32 s53, s54, {p * SLOT}")
        for i in range(7):
            k(f"    s_add_u32 m0, s55, {p * SLOT + 1024 * i}")
            k(f"    buffer_load_dwordx4 v{vL16}, s[40:43], s53 offen {WNT} lds")
            if i < 6: k(f"    s_add_u32 s53, s53, 1024")
    pstamp(k, "w1_issued")
    w2_load(k)
    for p in range(8): k(f"    s_mov_b32 s{72 + p}, {p}")
    k(f"    s_mov_b32 s{sPASS}, 0")
    pstamp(k, "prefetch_issued")
    k("chain_pass:")
    team_barrier(k, "tb")
    pstamp(k, "bar_ln", True)
    srd(k, 36, WS, S * D * 2, XS1)
    srd(k, 40, WS, 0x380000, W1S)
    srd(k, 44, WS, 0x700000, HS1)
    k(f"""    s_mul_i32 s54, s{sJ}, {8 * SLOT}
    s_mul_i32 s55, s{sW}, 7168
    s_add_u32 s54, s54, s55""")
    emit_g1(k)
    pstamp(k, "g1epi", True)
    team_barrier(k, "tb")
    pstamp(k, "bar_g1", True)
    srd(k, 36, WS, 0x700000, HS1)
    srd(k, 44, WS, S * D * 2, X1)
    k(f"    s_cmp_eq_u32 s{sPASS}, 0")
    k(f"    s_cbranch_scc0 chain_o2")
    srd(k, 48, WS, S * D * 2, X2)
    k("    s_branch chain_o3")
    k("chain_o2:")
    srd(k, 48, OUT, S * D * 2)
    k("chain_o3:")
    emit_g2(k)
    pstamp(k, "g2epi", True)
    k(f"    s_cmp_lg_u32 s{sPASS}, 0")
    k(f"    s_cbranch_scc1 chain_done2")
    k("    s_barrier")
    srd(k, 40, WS, 0x380000, W1S)
    k(f"""    s_mul_i32 s54, s{sJ}, {8 * SLOT}
    s_mul_i32 s55, s{sW}, 7168
    s_add_u32 s54, s54, s55
    s_add_u32 s53, s54, {4 * SLOT}""")
    for i in range(7):
        k(f"    s_add_u32 m0, s55, {4 * SLOT + 1024 * i}")
        k(f"    buffer_load_dwordx4 v{vL16}, s[40:43], s53 offen {WNT} lds")
        if i < 6: k(f"    s_add_u32 s53, s53, 1024")
    srd(k, 40, WS, S * D * 2, YR)
    k(f"""    s_lshl_b32 s34, s{sT}, 7
    s_lshl_b32 s35, s{sJ}, 3
    s_add_u32 s32, s34, s35
    s_lshl_b32 s34, s{sW}, 1
    s_add_u32 s34, s34, s32
    s_lshl_b32 s35, s34, 10
    buffer_load_dwordx4 v[88:91], v{vL16}, s[40:43], s35 offen sc1
    buffer_load_dwordx4 v[92:95], v{vL16}, s[40:43], s35 offen offset:1024 sc1""")
    team_barrier(k, "tb")
    pstamp(k, "bar_g2")
    srd(k, 36, WS, S * D * 2, X2)
    srd(k, 44, WS, S * D * 2, X1)
    srd(k, 48, WS, S * D * 2, XS1)
    emit_ln_stage(k, False)
    for p, c in enumerate((5, 6, 7, 3, 4, 0, 1, 2)): k(f"    s_mov_b32 s{72 + p}, {c}")
    k(f"    s_mov_b32 s{sPASS}, 1")
    pstamp(k, "ln2")
    k("    s_branch chain_pass")
    k("chain_done2:")
    if STAMP["on"]:
        k("    s_waitcnt vmcnt(0)")
        pstamp(k, "end")
        k("    s_memrealtime s[100:101]")
        k("    s_waitcnt lgkmcnt(0)")
        k("    v_writelane_b32 v15, s100, 31")
        k(f"""    s_add_u32 s36, s28, 0x3800000
    s_addc_u32 s37, s29, 0
    s_mov_b32 s38, 0x40000
    s_mov_b32 s39, 0x20000
    s_lshl_b32 s40, s2, 10
    v_lshlrev_b32 v1, 2, v0
    buffer_store_dword v15, v1, s[36:39], s40 offen
    s_waitcnt vmcnt(0)""")
        import json; json.dump(STN, open("stn.json", "w"))
    k(name + "_done:")
    k("    s_endpgm")
    kernel_desc(k, name, 512, 102, accum=256)
```

```python
import sys; sys.path.insert(0, "tools")
from asmlib import *

S, D, F = 2048, 512, 1792
Q, KK, VV, SH, SSMK, SSMD, BX, WG, WU, WD, OUT, DBG, WS = 4, 6, 8, 10, 12, 14, 16, 18, 20, 22, 24, 26, 28

URS   = 4224
UR    = 0x0000000
YT    = 0x0400000
W1S   = 0x0800000
W2S   = 0x0C00000
XS1   = 0x1000000
XS2   = 0x1200000
X1    = 0x1400000
X2    = 0x1600000
X3    = 0x1800000
YR    = 0x1A00000
HS1   = 0x2000000
HS2   = 0x2800000
FLAGS = 0x3000000
WS_BYTES = 268435456

def load_args(k):
    k("""    s_load_dwordx16 s[4:19], s[0:1], 0
    s_load_dwordx8 s[20:27], s[0:1], 64
    s_load_dwordx2 s[28:29], s[0:1], 96""")

def srd(k, dst, base, size, add=0):
    if add:
        k(f"    s_add_u32 s{dst}, s{base}, {hex(add)}")
        k(f"    s_addc_u32 s{dst+1}, s{base+1}, 0")
    else:
        k(f"    s_mov_b32 s{dst}, s{base}")
        k(f"    s_mov_b32 s{dst+1}, s{base+1}")
    k(f"    s_mov_b32 s{dst+2}, {hex(size)}")
    k(f"    s_mov_b32 s{dst+3}, 0x20000")

def guard(k, n, lab):
    k(f"    s_cmp_ge_u32 s2, {n}")
    k(f"    s_cbranch_scc1 {lab}")


STAMP = {"on": False, "n": 0}
def stamp(k):
    if not STAMP["on"]: return
    i = STAMP["n"]; STAMP["n"] += 1
    assert i < 20
    k(f"    s_memtime s[100:101]")
    k(f"    s_waitcnt lgkmcnt(0)")
    k(f"    s_mov_b32 s{80 + i}, s100")
def stamp_rt(k):
    if not STAMP["on"]: return
    i = STAMP["n"]; STAMP["n"] += 1
    k(f"    s_memrealtime s[100:101]")
    k(f"    s_waitcnt lgkmcnt(0)")
    k(f"    s_mov_b32 s{80 + i}, s100")
def stamp_reset():
    STAMP["n"] = 0
def stamp_dump(k, slot):
    if not STAMP["on"]: return
    n = STAMP["n"]
    k(f"    s_add_u32 s36, s28, {hex(0x3800000 + slot * 0x10000)}")
    k("    s_addc_u32 s37, s29, 0")
    k("    s_mov_b32 s38, 0x10000")
    k("    s_mov_b32 s39, 0x20000")
    k("    s_lshl_b32 s40, s2, 7")
    k("    v_mov_b32 v0, 0")
    for i in range(n):
        k(f"    v_mov_b32 v1, s{80 + i}")
        k(f"    buffer_store_dword v1, v0, s[36:39], s40 offen offset:{4 * i}")
    k("    s_waitcnt vmcnt(0)")

import json
STAMP_NAMES = {}
class Stamper:
    def __init__(self, k, vreg, slot):
        self.k, self.v, self.slot, self.n = k, vreg, slot, 0
        STAMP_NAMES[slot] = []
    def begin(self):
        if not STAMP["on"]: return
        k = self.k
        k(f"    v_mov_b32 v{self.v}, 0")
        k("    s_memrealtime s[100:101]")
        k("    s_waitcnt lgkmcnt(0)")
        k(f"    v_writelane_b32 v{self.v}, s100, 62")
        self("start")
    def __call__(self, name):
        if not STAMP["on"]: return
        k = self.k
        k("    s_memtime s[100:101]")
        k("    s_waitcnt lgkmcnt(0)")
        k(f"    v_writelane_b32 v{self.v}, s100, {self.n}")
        STAMP_NAMES[self.slot].append(name); self.n += 1
    def end(self):
        if not STAMP["on"]: return
        k = self.k
        k("    s_waitcnt vmcnt(0)")
        self("end")
        k("    s_memrealtime s[100:101]")
        k("    s_waitcnt lgkmcnt(0)")
        k(f"    v_writelane_b32 v{self.v}, s100, 63")
        k(f"""    s_add_u32 s36, s28, {hex(0x3900000 + self.slot * 0x100000)}
    s_addc_u32 s37, s29, 0
    s_mov_b32 s38, 0x100000
    s_mov_b32 s39, 0x20000
    s_lshl_b32 s40, s2, 10
    v_lshlrev_b32 v1, 2, v0
    buffer_store_dword v{self.v}, v1, s[36:39], s40 offen
    s_waitcnt vmcnt(0)""")
        json.dump(STAMP_NAMES, open("stn2.json", "w"))
```

```python
from common import *
from ln2 import *
import chain3
from chain3 import (SLOT, SCR, LNB, CHAIN_LDS, sT, sJ, sW, sPASS, sEP, S_FL, vL16, vB2, vB4, vFLAG, pstamp, team_barrier,
                    emit_ln_stage, emit_g2, pretouch_all, ACC, XR, RING, STN)
import os

UCH = 8 * 4160
CS = 4160
HB = 2 * UCH
HCH = 7600
XB = 81920
sX, sR = 62, 63
GFL = FLAGS + 4096
NW2C = int(os.environ.get("NW2C", "22"))
NPRE = int(os.environ.get("NPRE", "4"))
HL = NPRE * SLOT // 256
HP = NPRE * SLOT // 2048

def w2_pair(ks, soff):
    return [f"    buffer_load_dwordx4 a[{8*ks}:{8*ks+3}], v{vL16}, s[48:51], s{soff} offen",
            f"    buffer_load_dwordx4 a[{8*ks+4}:{8*ks+7}], v{vL16}, s[48:51], s{soff} offen offset:1024",
            f"    s_add_u32 s{soff}, s{soff}, 2048"]

def pretouch2(k):
    k(f"""    s_mov_b32 s36, s{WS}
    s_mov_b32 s37, s{WS+1}
    s_mov_b32 s38, 0x3000000
    s_mov_b32 s39, 0x20000
    v_lshlrev_b32 v13, 7, v1
    s_lshl_b32 s58, s{sT}, 7
    s_lshl_b32 s56, s{sJ}, 3
    s_add_u32 s58, s58, s56              ; row0
    s_lshl_b32 s57, s58, 10
    s_lshr_b32 s53, s58, 5
    s_lshl_b32 s53, s53, 15
    s_and_b32 s56, s58, 31
    s_lshl_b32 s56, s56, 4
    s_add_u32 s53, s53, s56
    s_add_u32 s53, s53, {hex(XS1)}
    s_add_u32 s56, s57, {hex(X1)}
    s_add_u32 s57, s57, {hex(X2)}
    s_cmp_eq_u32 s{sW}, 1
    s_cselect_b32 s56, s57, s56
    s_cmp_eq_u32 s{sW}, 2
    s_cselect_b32 s56, s53, s56
    v_lshlrev_b32 v12, 9, v1
    s_cselect_b64 vcc, -1, 0
    v_cndmask_b32 v12, v13, v12, vcc
    buffer_load_dword v14, v12, s[36:39], s56 offen
    s_lshl_b32 s58, s{sT}, 2
    s_add_u32 s58, s58, s{sW}
    s_mul_i32 s57, s58, 112
    s_mul_i32 s53, s{sJ}, 7
    s_add_u32 s57, s57, s53
    s_lshl_b32 s57, s57, 10
    s_add_u32 s57, s57, {hex(HS1)}
    v_min_u32 v12, {55 * 128}, v13
    buffer_load_dword v14, v12, s[36:39], s57 offen""")

WARM_N = {"w2": (7, 448), "w1a": ((HL + 63) // 64, HL), "w1b": (6, 336)}
def warm_setup(k):
    k(f"""    s_mov_b32 s84, s{WS}
    s_mov_b32 s85, s{WS+1}
    s_mov_b32 s86, 0x3000000
    s_mov_b32 s87, 0x20000
    v_lshlrev_b32 v13, 7, v1
    s_and_b32 s88, s{sJ}, 7
    s_mul_i32 s88, s88, {112 * 2048}
    s_lshr_b32 s91, s{sR}, 4
    s_lshl_b32 s92, s91, 1
    s_lshr_b32 s89, s{sJ}, 3
    s_add_u32 s92, s92, s89
    s_mul_i32 s92, s92, {448 * 128}
    s_add_u32 s88, s88, s92
    s_add_u32 s88, s88, {hex(W2S)}
    s_mul_i32 s89, s{sJ}, {8 * SLOT}
    s_mul_i32 s92, s91, {HL * 128}
    s_add_u32 s89, s89, s92
    s_add_u32 s89, s89, {hex(W1S)}""")
def warm_lines(kind, rnd):
    cnt, nl = WARM_N[kind]
    sb = {"w2": 88, "w1a": 89, "w1b": 90}[kind]
    lab = f"wm_{kind}_{rnd}"
    L = []
    lo = 4 * rnd
    nvalid = max(0, min(4, cnt - lo))
    if nvalid == 0: return []
    if nvalid < 4:
        L += [f"    s_cmp_ge_u32 s{sW}, {nvalid}", f"    s_cbranch_scc1 {lab}"]
    L += [f"    s_lshl_b32 s92, s{sW}, 13", f"    s_add_u32 s92, s92, {lo * 8192}",
          f"    v_add_u32 v12, s92, v13", f"    v_min_u32 v12, {(nl - 1) * 128}, v12",
          f"    buffer_load_dword v14, v12, s[84:87], s{sb} offen"]
    if nvalid < 4: L += [f"{lab}:"]
    return L
def touch1(kind, i):
    cnt, nl = WARM_N[kind]
    sb = {"w2": 88, "w1a": 89, "w1b": 90}[kind]
    lab = f"t1_{kind}_{i}"
    return [f"    s_cmp_lg_u32 s{sW}, {i % 4}", f"    s_cbranch_scc1 {lab}",
            f"    v_add_u32 v12, {i * 8192}, v13", f"    v_min_u32 v12, {(nl - 1) * 128}, v12",
            f"    buffer_load_dword v14, v12, s[84:87], s{sb} offen", f"{lab}:"]

def T(i, wave):
    if os.environ.get("WARM", "1") != "1": return []
    kind, j = ("w2", i) if i < 7 else ("w1a", i - 7)
    cnt, nl = WARM_N[kind]
    sb = {"w2": 88, "w1a": 89}[kind]
    lab = f"T_{i}"
    return [f"    s_cmp_lg_u32 s{sW}, {wave}", f"    s_cbranch_scc1 {lab}",
            f"    v_add_u32 v12, {j * 8192}, v13", f"    v_min_u32 v12, {(nl - 1) * 128}, v12",
            f"    buffer_load_dword v14, v12, s[84:87], s{sb} offen", f"{lab}:"]
def emitT(k, i, wave):
    for ln in T(i, wave): k(ln)

def warm(k, kind, rnd):
    if os.environ.get("WARM", "1") != "1": return
    for ln in warm_lines(kind, rnd): k(ln)

def emit_conv2(k):
    srd(k, 36, WS, 0x220000, UR)
    srd(k, 40, SSMK, D * S * 2)
    srd(k, 44, WS, D * S * 2, YT)
    k(f"""
    s_lshr_b32 s34, s{sW}, 1             ; ci
    s_and_b32 s35, s{sW}, 1              ; hf
    s_lshl_b32 s52, s2, 1
    s_add_u32 s52, s52, s34              ; channel
    s_lshl_b32 s53, s52, 1
    s_and_b32 s54, s53, 0xfffffffc
    s_load_dword s55, s[{SSMD}:{SSMD+1}], s54
    ; u units: m = (tid&127) (+128), and the following unit
    s_mul_i32 s56, s52, {URS}
    v_and_b32 v16, 127, v0
    v_lshlrev_b32 v16, 4, v16            ; 16*m
    buffer_load_dwordx4 v[20:23], v16, s[36:39], s56 offen
    buffer_load_dwordx4 v[24:27], v16, s[36:39], s56 offen offset:16
    buffer_load_dwordx4 v[28:31], v16, s[36:39], s56 offen offset:2048
    buffer_load_dwordx4 v[32:35], v16, s[36:39], s56 offen offset:2064
    s_lshl_b32 s56, s52, 12
    s_lshl_b32 s58, s35, 11
    s_add_u32 s56, s56, s58
    buffer_load_dwordx4 v[36:39], v{vL16}, s[40:43], s56 offen
    buffer_load_dwordx4 v[40:43], v{vL16}, s[40:43], s56 offen offset:1024
    s_mul_i32 s58, s34, {HCH}
    s_add_u32 s58, s58, {HB}
    s_lshl_b32 s59, s35, 7
    v_add_u32 v17, s59, v1
    v_min_u32 v18, 154, v17
    v_lshlrev_b32 v18, 4, v18
    v_add_u32 v18, s58, v18
    v_add_u32 v19, 64, v17
    v_min_u32 v19, 154, v19
    v_lshlrev_b32 v19, 4, v19
    v_add_u32 v19, s58, v19
    v_mov_b32 v44, 0
    v_mov_b32 v45, 0
    v_mov_b32 v46, 0
    v_mov_b32 v47, 0
    ds_write_b128 v18, v[44:47]
    ds_write_b128 v19, v[44:47]
    v_lshrrev_b32 v17, 2, v1
    v_and_b32 v17, 7, v17
    v_mul_u32_u24 v17, {CS}, v17
    v_and_b32 v18, 3, v1
    v_lshlrev_b32 v18, 4, v18
    v_add_u32 v17, v17, v18
    s_mul_i32 s59, s34, {UCH}
    s_add_u32 s60, s59, 4096
    v_add_u32 v17, s60, v17
    ds_write_b128 v17, v[44:47]
    v_lshrrev_b32 v18, 2, v1
    s_lshl_b32 s60, s35, 5
    s_add_u32 s60, s60, 31
    v_add_u32 v18, s60, v18
    v_mul_u32_u24 v18, 80, v18
    v_and_b32 v19, 3, v1
    v_lshlrev_b32 v19, 4, v19
    v_add_u32 v18, v18, v19
    v_add_u32 v18, s58, v18
    v_add_u32 v16, s59, v16""")
    pstamp(k, "cv_issued")
    k(f"""    s_cmp_lg_u32 s{sW}, 0
    s_cbranch_scc1 fz_tk
    s_waitcnt vmcnt(6)
    v_mov_b32 v7, {LNB}
    s_mov_b64 exec, 1
    ds_write_b32 v7, v6
    s_mov_b64 exec, -1
fz_tk:
    v_mov_b32 v7, {LNB}
    s_waitcnt lgkmcnt(0)
    s_barrier
    ds_read_b32 v6, v7
    s_waitcnt lgkmcnt(0)
    v_readfirstlane_b32 s{sR}, v6
    s_cmp_ge_u32 s{sR}, 32
    s_cbranch_scc1 fused_done
    s_lshl_b32 s{sT}, s{sX}, 1
    s_lshr_b32 s{sJ}, s{sR}, 4
    s_add_u32 s{sT}, s{sT}, s{sJ}
    s_and_b32 s{sJ}, s{sR}, 15""")
    pstamp(k, "roles")
    warm_setup(k)
    emitT(k, 0, 0); emitT(k, 1, 1); emitT(k, 2, 2)
    k(f"    s_cmp_eq_u32 s{sW}, 3")
    k("    s_cbranch_scc1 fz_w3")
    k("    s_waitcnt vmcnt(1)" if os.environ.get("WARM", "1") == "1" else "    s_waitcnt vmcnt(0)")
    k("fz_w3:")
    k(f"    s_cmp_lg_u32 s{sW}, 3")
    k("    s_cbranch_scc1 fz_w4")
    k("    s_waitcnt vmcnt(0)")
    k("fz_w4:")
    emitT(k, 3, 3)
    pstamp(k, "cv_loaded")
    k("    ds_write_b128 v18, v[36:39]")
    k("    ds_write_b128 v18, v[40:43] offset:1280")
    for it in range(2):
        d = 20 + 8 * it
        Dp, Sa, Sb = 48, 56, 64
        for i in range(6): k(f"    v_mov_b32 v{Dp + i}, v{d + i + 1}")
        for i in range(7): k(f"    v_alignbit_b32 v{Sa + i}, v{d + i + 1}, v{d + i}, 16")
        for i in range(6): k(f"    v_alignbit_b32 v{Sb + i}, v{d + i + 2}, v{d + i + 1}, 16")
        src = {0: d, 2: Dp, 4: d + 2, 6: Dp + 2, 1: Sa, 3: Sb, 5: Sa + 2, 7: Sb + 2}
        for c in range(8):
            k(f"    ds_write_b128 v16, v[{src[c]}:{src[c]+3}] offset:{CS * c + 2048 * it}")
    k(f"""
    v_and_b32 v8, 31, v1                 ; i / n
    v_lshrrev_b32 v9, 5, v1              ; g
    v_and_b32 v17, 7, v8
    v_sub_u32 v17, 7, v17
    v_mul_u32_u24 v17, {CS}, v17
    v_lshrrev_b32 v18, 3, v8
    v_sub_u32 v18, v9, v18
    v_add_u32 v18, 255, v18
    v_lshlrev_b32 v18, 4, v18
    v_add_u32 v17, v17, v18
    s_lshl_b32 s60, s35, 10
    s_sub_u32 s59, s59, s60
    s_sub_u32 s59, s59, {64 * 47}
    v_add_u32 v10, s59, v17
    v_mul_u32_u24 v17, 80, v8
    v_lshlrev_b32 v18, 4, v9
    v_add_u32 v17, v17, v18
    s_mul_i32 s60, s35, {80 * 16}
    s_sub_u32 s60, s58, s60
    s_add_u32 s60, s60, {80 * 31 - 80 * 15}
    v_add_u32 v11, s60, v17
""")
    emitT(k, 4, 0); emitT(k, 5, 1)
    k("    s_waitcnt lgkmcnt(0)")
    k("    s_barrier")
    pstamp(k, "cv_bar")
    srd(k, 48, WS, 0x1C0000, W2S)
    k(f"""    s_and_b32 s53, s{sJ}, 7
    s_mul_i32 s53, s53, 112
    s_mul_i32 s56, s{sW}, 28
    s_add_u32 s53, s53, s56
    s_lshl_b32 s61, s53, 11""")
    NS, base, CA = 3, 96, 64
    def reads(n):
        t, kh = n >> 1, n & 1
        b = base + 16 * (n % NS)
        k(f"    ds_read_b128 v[{b}:{b+3}], v10 offset:{64 * (47 - t) + 32 * kh}")
        k(f"    ds_read_b128 v[{b+4}:{b+7}], v11 offset:{80 * (15 - t) + 32 * kh}")
        k(f"    ds_read_b128 v[{b+8}:{b+11}], v11 offset:{80 * (15 - t) + 32 * kh + 2560}")
        k(f"    ds_read_b128 v[{b+12}:{b+15}], v10 offset:{64 * (15 - t) + 32 * kh}")
    reads(0); reads(1)
    w2n = 0
    W2START = int(os.environ.get("W2START", "2"))
    warm_at = {2: (6, 2), 8: (7, 3), 14: (8, 0), 20: (9, 1), 26: (10, 2)}
    for n in range(32):
        if n + 2 < 32: reads(n + 2)
        out = 8 if n + 2 < 32 else (4 if n + 1 < 32 else 0)
        b = base + 16 * (n % NS)
        C0 = "0" if n == 0 else f"v[{CA}:{CA+15}]"
        C1 = "0" if n == 0 else f"v[{CA+16}:{CA+31}]"
        k(f"    s_waitcnt lgkmcnt({out + 2})")
        k(f"    v_mfma_f32_32x32x16_bf16 v[{CA}:{CA+15}], v[{b}:{b+3}], v[{b+4}:{b+7}], {C0}")
        lines = []
        while w2n < NW2C and n >= W2START and (w2n * (32 - W2START) <= (n - W2START) * NW2C):
            lines += w2_pair(w2n, 61); w2n += 1
        if lines: k(lines[0])
        k(f"    s_waitcnt lgkmcnt({out + 1})")
        k(f"    v_mfma_f32_32x32x16_bf16 v[{CA+16}:{CA+31}], v[{b}:{b+3}], v[{b+8}:{b+11}], {C1}")
        for ln in lines[1:]: k(ln)
        k(f"    s_waitcnt lgkmcnt({out})")
        k(f"    v_mfma_f32_32x32x16_bf16 v[{CA+16}:{CA+31}], v[{b+12}:{b+15}], v[{b+4}:{b+7}], v[{CA+16}:{CA+31}]")
        if n in warm_at:
            emitT(k, *warm_at[n])
    assert w2n == NW2C
    pstamp(k, "cv_main")
    emitT(k, 11, 3)
    for ks in range(NW2C, min(NW2C + 3, 28)):
        for ln in w2_pair(ks, 61): k(ln)
    k(f"""
    s_lshl_b32 s59, s{sW}, 12
    s_add_u32 s59, s59, {XB}
    v_add_u32 v16, s59, v{vL16}
    s_xor_b32 s60, s{sW}, 1
    s_lshl_b32 s60, s60, 12
    s_add_u32 s60, s60, {XB}
    v_add_u32 v17, s60, v{vL16}
    v_lshlrev_b32 v18, 5, v8
    v_lshlrev_b32 v19, 2, v9
    v_add_u32 v18, v18, v19
    s_lshl_b32 s60, s35, 10
    v_add_u32 v18, s60, v18              ; t0 (q=0)
    v_lshlrev_b32 v19, 1, v18
    s_mul_i32 s60, s34, {UCH}
    s_add_u32 s60, s60, {2 * 2044 - 48}
    v_sub_u32 v19, s60, v19
    ds_read_b64 v[20:21], v19 offset:48
    ds_read_b64 v[22:23], v19 offset:32
    ds_read_b64 v[24:25], v19 offset:16
    ds_read_b64 v[26:27], v19 offset:0
    s_cmp_eq_u32 s35, 0
    s_cbranch_scc1 fz_h0""")
    for q in range(4): k(f"    ds_write_b128 v16, v[{CA + 4 * q}:{CA + 4 * q + 3}] offset:{1024 * q}")
    for r in range(0, 16, 2): k(f"    v_pk_mul_f32 v[{48 + r}:{49 + r}], v[{CA + 16 + r}:{CA + 17 + r}], 1.0 op_sel_hi:[1,0]")
    k("    s_branch fz_x")
    k("fz_h0:")
    k("    s_nop 7")
    for q in range(4): k(f"    ds_write_b128 v16, v[{CA + 16 + 4 * q}:{CA + 16 + 4 * q + 3}] offset:{1024 * q}")
    for r in range(0, 16, 2): k(f"    v_pk_mul_f32 v[{48 + r}:{49 + r}], v[{CA + r}:{CA + r + 1}], 1.0 op_sel_hi:[1,0]")
    k("fz_x:")
    k(f"""    s_and_b32 s59, s52, 1
    s_lshl_b32 s59, s59, 4
    s_lshr_b32 s55, s55, s59
    s_lshl_b32 s55, s55, 16
    s_waitcnt lgkmcnt(0)
    s_barrier""")
    for q in range(4): k(f"    ds_read_b128 v[{32 + 4 * q}:{35 + 4 * q}], v17 offset:{1024 * q}")
    emitT(k, 12, 0)
    for ks in range(min(NW2C + 3, 28), 28):
        for ln in w2_pair(ks, 61): k(ln)
    for q in range(4):
        u0, u1 = 20 + 2 * q, 21 + 2 * q
        k(f"    v_and_b32 v{96 + 4 * q}, 0xffff0000, v{u1}")
        k(f"    v_lshlrev_b32 v{97 + 4 * q}, 16, v{u1}")
        k(f"    v_and_b32 v{98 + 4 * q}, 0xffff0000, v{u0}")
        k(f"    v_lshlrev_b32 v{99 + 4 * q}, 16, v{u0}")
    for r in range(16): k(f"    v_fmac_f32 v{48 + r}, s55, v{96 + r}")
    k("    s_waitcnt lgkmcnt(0)")
    for r in range(0, 16, 2): pk(k, "v_pk_add_f32", 48 + r, 48 + r, 32 + r)
    for q in range(4):
        k(f"    v_cvt_pk_bf16_f32 v{20 + 2 * q}, v{48 + 4 * q}, v{49 + 4 * q}")
        k(f"    v_cvt_pk_bf16_f32 v{21 + 2 * q}, v{50 + 4 * q}, v{51 + 4 * q}")
    k(f"""    v_lshlrev_b32 v28, 6, v8              ; 64 n
    v_lshlrev_b32 v29, 3, v9              ; 8 hi
    v_add_u32 v28, v28, v29
    s_xor_b32 s60, s{sW}, 1
    s_lshl_b32 s60, s60, 12
    s_add_u32 s60, s60, {XB}
    v_add_u32 v28, s60, v28""")
    for q in range(4): k(f"    ds_write_b64 v28, v[{20 + 2 * q}:{21 + 2 * q}] offset:{16 * q}")
    k(f"""    s_waitcnt lgkmcnt(0)
    ds_read_b128 v[32:35], v17
    ds_read_b128 v[36:39], v17 offset:1024
    s_lshl_b32 s56, s52, 12
    s_lshl_b32 s60, s35, 11
    s_add_u32 s56, s56, s60
    s_waitcnt lgkmcnt(0)
    buffer_store_dwordx4 v[32:35], v{vL16}, s[44:47], s56 offen sc1
    buffer_store_dwordx4 v[36:39], v{vL16}, s[44:47], s56 offen offset:1024 sc1""")
    pstamp(k, "cv_stored")

def global_barrier_and_w1(k):
    k(f"""    s_add_u32 s36, s{WS}, {hex(GFL)}
    s_addc_u32 s37, s{WS+1}, 0
    s_mov_b32 s38, 2048
    s_mov_b32 s39, 0x20000
    s_waitcnt vmcnt(0)
    s_barrier
    s_cmp_lg_u32 s{sW}, 0
    s_cbranch_scc1 {"gb_pf" if os.environ.get("GBPF", "win") == "win" else "gb_w0"}
    s_lshl_b32 s34, s{sX}, 7
    s_lshl_b32 s35, s{sR}, 2
    s_add_u32 s35, s35, s34
    v_mov_b32 v6, 1
    v_mov_b32 v7, 0
    s_mov_b64 exec, 1
    buffer_store_dword v6, v7, s[36:39], s35 offen
    s_mov_b64 exec, -1
    s_mov_b32 s69, 0
    s_cmp_lg_u32 s{sR}, 0
    s_cbranch_scc1 gb_nl
    v_and_b32 v16, 31, v1
    v_lshlrev_b32 v16, 2, v16
gb_p1:
    buffer_load_dword v17, v16, s[36:39], s34 offen sc1
    s_add_u32 s69, s69, 1
    s_cmp_gt_u32 s69, 200000
    s_cbranch_scc1 gb_w
    s_waitcnt vmcnt(0)
    v_cmp_ne_u32 vcc, 1, v17
    s_cmp_lg_u64 vcc, 0
    s_cbranch_scc1 gb_p1
    v_and_b32 v16, 7, v1
    v_lshlrev_b32 v16, 7, v16
    s_lshl_b32 s35, s{sX}, 2
    s_add_u32 s35, s35, 1024
    s_mov_b64 exec, 0xff
    buffer_store_dword v6, v16, s[36:39], s35 offen sc1
    s_mov_b64 exec, -1
gb_nl:
    v_and_b32 v16, 7, v1
    v_lshlrev_b32 v16, 2, v16
    s_add_u32 s35, s34, 1024
gb_p2:
    buffer_load_dword v17, v16, s[36:39], s35 offen sc1
    s_add_u32 s69, s69, 1
    s_cmp_gt_u32 s69, 200000
    s_cbranch_scc1 gb_w
    s_waitcnt vmcnt(0)
    v_cmp_ne_u32 vcc, 1, v17
    s_cmp_lg_u64 vcc, 0
    s_cbranch_scc1 gb_p2""")
    pstamp(k, "gb_poll")
    if os.environ.get("GBPF", "win") != "win":
        k("gb_w0:")
        k("    s_barrier")
        k(f"    s_cmp_lg_u32 s{sW}, 0")
        k("    s_cbranch_scc1 gb_pf")
    k(f"""    s_branch gb_w
gb_pf:
    s_cmp_lg_u32 s{sW}, 1
    s_cbranch_scc1 gb_dma
    s_lshl_b32 s58, s{sT}, 7
    s_lshl_b32 s56, s{sJ}, 3
    s_add_u32 s58, s58, s56              ; row0
    s_lshl_b32 s57, s58, 10
    s_add_u32 s57, s57, {hex(X1)}
    s_lshr_b32 s53, s58, 5
    s_lshl_b32 s53, s53, 15
    s_and_b32 s56, s58, 31
    s_lshl_b32 s56, s56, 4
    s_add_u32 s53, s53, s56
    s_add_u32 s53, s53, {hex(XS1)}
""")
    for j in range(6, (HL + 63) // 64):
        k(f"    v_add_u32 v12, {j * 8192}, v13")
        k(f"    v_min_u32 v12, {(HL - 1) * 128}, v12")
        k(f"    buffer_load_dword v14, v12, s[84:87], s89 offen")
        if j > 6: k("    s_waitcnt vmcnt(1)")
    k(f"""""")
    if False:
        k(f"""    s_waitcnt vmcnt(1)
    v_lshlrev_b32 v12, 9, v1
    buffer_load_dword v14, v12, s[84:87], s53 offen
    s_waitcnt vmcnt(1)
    buffer_load_dword v14, v13, s[84:87], s57 offen""")
    k(f"""    s_branch gb_w
gb_dma:
    s_add_u32 s40, s{WS}, {hex(W1S)}
    s_addc_u32 s41, s{WS+1}, 0
    s_mov_b32 s42, 0x380000
    s_mov_b32 s43, 0x20000
    s_sub_u32 s34, s{sW}, 2
    s_mul_i32 s34, s34, {HP * 1024}
    s_mul_i32 s35, s{sJ}, {8 * SLOT}
    s_add_u32 s35, s35, s34""")
    for i in range(HP):
        k("    s_mov_b32 m0, s34")
        k(f"    buffer_load_dwordx4 v{vL16}, s[40:43], s35 offen lds")
        if i < HP - 1:
            k("    s_add_u32 s34, s34, 1024")
            k("    s_add_u32 s35, s35, 1024")
    k("gb_w:")
    k("    s_barrier")
    k("    v_mov_b32 v7, 0")

def emit_g1f(k):
    k(f"""
    s_lshl_b32 s34, s{sT}, 2
    s_add_u32 s34, s34, s{sW}
    s_lshl_b32 s52, s34, 15
    s_and_b32 s53, s{sJ}, 7
    s_mul_i32 s53, s53, 112
    s_mul_i32 s56, s{sW}, 28
    s_add_u32 s53, s53, s56
    s_add_u32 s53, s53, {NW2C}
    s_lshl_b32 s61, s53, 11
    s_cmp_eq_u32 s{sPASS}, 0
    s_cselect_b64 vcc, -1, 0""")
    issued = []
    def xl(p):
        out = []
        for ks in range(4):
            r = XR + 16 * p + 4 * ks
            pre = [f"    s_lshl_b32 s53, s{72 + p}, 12", f"    s_add_u32 s53, s53, s52"] if ks == 0 else []
            out.append((f"x{p}", pre + [f"    buffer_load_dwordx4 v[{r}:{r+3}], v{vL16}, s[36:39], s53 offen offset:{1024 * ks} sc1"]))
        return out
    def wl(p):
        out = []
        for i in range(7):
            pre = [f"    s_mul_i32 s60, s{72 + p}, {SLOT}", "    s_add_u32 s60, s60, s54"] if i == 0 else ["    s_add_u32 s60, s60, 1024"]
            out.append((f"w{p}", pre + [f"    s_add_u32 m0, s55, {(p % 5) * SLOT + 1024 * i}",
                                         f"    buffer_load_dwordx4 v{vL16}, s[40:43], s60 offen lds"]))
        return out
    def w2l(ks_list):
        out = []
        for ks in ks_list:
            lab = k.label("w2s")
            out.append((None, [f"    s_cbranch_vccz {lab}"] + w2_pair(ks, 61) + [f"{lab}:"]))
        return out
    def emit_now(lst):
        for tag, lines in lst:
            for ln in lines: k(ln)
            if tag is not None: issued.append(tag)
    emit_now(xl(0)); emit_now(xl(1))
    pstamp(k, "g1_issue", True)
    def ptouch():
        lab = k.label("pt")
        L = [f"    s_cbranch_vccz {lab}",
             f"    s_mul_i32 s92, s34, 112", f"    s_mul_i32 s91, s{sJ}, 7", "    s_add_u32 s92, s92, s91", "    s_lshl_b32 s92, s92, 10",
             f"    s_add_u32 s92, s92, {hex(HS1)}", f"    v_min_u32 v12, {55 * 128}, v13",
             "    buffer_load_dword v14, v12, s[84:87], s92 offen", f"{lab}:"]
        lab2 = k.label("pt")
        L2 = [f"    s_cbranch_vccz {lab2}", f"    s_cmp_lg_u32 s{sW}, 0", f"    s_cbranch_scc1 {lab2}",
              f"    s_lshl_b32 s92, s{sT}, 7", f"    s_lshl_b32 s91, s{sJ}, 3", "    s_add_u32 s92, s92, s91", "    s_lshl_b32 s92, s92, 10",
              f"    s_add_u32 s92, s92, {hex(X2)}", "    buffer_load_dword v14, v13, s[84:87], s92 offen", f"{lab2}:"]
        return [(None, L), (None, L2)]
    rest = []
    def take(n):
        r = rest[:n]; del rest[:n]; return r
    side = {0: xl(2) + (wl(4) if NPRE == 4 else []), 1: xl(3) + w2l(take(4)), 2: xl(4) + wl(5), 3: xl(5) + wl(6), 4: xl(6) + wl(7),
            5: xl(7) + (ptouch() if os.environ.get("PT", "0") == "1" else []) + w2l(take(2)), 6: w2l(take(4)), 7: []}
    side[7] = w2l(rest[:])
    def need(p):
        c = [i for i, t in enumerate(issued) if t in (f"x{p}", f"w{p}")]
        return len(issued) - 1 - max(c)
    PD, NF = 5, 224
    pending = []
    def read(n):
        p, rem = divmod(n, 28)
        if rem == 0:
            assert not [e for e in pending if e[1][0] in (f"x{p}", f"w{p}")]
            k(f"    s_waitcnt vmcnt({need(p)})")
            k("    s_barrier")
            if p in (0, 1, 4): pstamp(k, f"g1_B{p}", True)
            lst = side.get(p, [])
            base = max(n - PD, 0)
            span = 24 if p < 7 else 20
            for i, e in enumerate(lst):
                pending.append((base + 1 + (i * span) // max(len(lst), 1), e))
        b = RING + 4 * (n % 8)
        sl = p % 5
        base = vL16 if sl < 2 else (vB2 if sl < 4 else vB4)
        off = (sl % 2 if sl < 4 else 0) * SLOT + rem * 1024
        k(f"    ds_read_b128 a[{b}:{b+3}], v{base} offset:{off}")
    for n in range(PD): read(n)
    for n in range(NF):
        if n + PD < NF: read(n + PD)
        out = min(PD, NF - 1 - n)
        p, rem = divmod(n, 28)
        ks, j = divmod(rem, 7)
        b = RING + 4 * (n % 8)
        B = XR + 16 * p + 4 * ks
        A = ACC + 16 * j
        k(f"    s_waitcnt lgkmcnt({out})")
        C = "0" if (p == 0 and ks == 0) else f"v[{A}:{A+15}]"
        k(f"    v_mfma_f32_32x32x16_bf16 v[{A}:{A+15}], a[{b}:{b+3}], v[{B}:{B+3}], {C}")
        while pending and pending[0][0] <= n:
            _, e = pending.pop(0)
            emit_now([e])
    assert not pending
    pstamp(k, "g1main", True)
    lab2 = k.label("pt")
    for ln in [f"    s_cbranch_vccz {lab2}", f"    s_cmp_lg_u32 s{sW}, 0", f"    s_cbranch_scc1 {lab2}",
               f"    s_lshl_b32 s92, s{sT}, 7", f"    s_lshl_b32 s91, s{sJ}, 3", "    s_add_u32 s92, s92, s91", "    s_lshl_b32 s92, s92, 10",
               f"    s_add_u32 s92, s92, {hex(X2)}", "    buffer_load_dword v14, v13, s[84:87], s92 offen", f"{lab2}:"]: k(ln)
    k(f"""
    s_mov_b32 s56, 0xbdd2d3e8
    s_mov_b32 s57, 0xbdd2d3e8
    v_mov_b32 v8, 0xc0135761
    v_mov_b32 v9, 0xc0135761
    s_mul_i32 s58, s34, 112
    s_mul_i32 s59, s{sJ}, 7
    s_add_u32 s58, s58, s59
    s_lshl_b32 s58, s58, 10""")
    for j in range(7):
        A = ACC + 16 * j
        T = 128 + 16 * (j & 1)
        for d in range(4): k(f"    v_pk_mul_f32 v[{T+2*d}:{T+2*d+1}], v[{A+2*d}:{A+2*d+1}], v[{A+2*d}:{A+2*d+1}]")
        for d in range(4): k(f"    v_pk_fma_f32 v[{T+2*d}:{T+2*d+1}], v[{T+2*d}:{T+2*d+1}], s[56:57], v[8:9]")
        for d in range(4): k(f"    v_pk_mul_f32 v[{T+2*d}:{T+2*d+1}], v[{T+2*d}:{T+2*d+1}], v[{A+2*d}:{A+2*d+1}]")
        for e in range(8): k(f"    v_exp_f32 v{T+e}, v{T+e}")
        for d in range(4): k(f"    v_pk_mul_f32 v[{A+2*d}:{A+2*d+1}], v[{A+2*d}:{A+2*d+1}], v[{A+8+2*d}:{A+8+2*d+1}]")
        for d in range(4): k(f"    v_pk_add_f32 v[{T+2*d}:{T+2*d+1}], v[{T+2*d}:{T+2*d+1}], 1.0 op_sel_hi:[1,0]")
        for e in range(8): k(f"    v_rcp_f32 v{T+e}, v{T+e}")
        for d in range(4): k(f"    v_pk_mul_f32 v[{A+2*d}:{A+2*d+1}], v[{A+2*d}:{A+2*d+1}], v[{T+2*d}:{T+2*d+1}]")
        for d in range(4): k(f"    v_cvt_pk_bf16_f32 v{T+8+d}, v{A+2*d}, v{A+2*d+1}")
        if chain3.FIRST_SC1:
            l1, l2 = k.label("g1st"), k.label("g1st")
            k(f"    s_cbranch_vccz {l1}")
            k(f"    buffer_store_dwordx4 v[{T+8}:{T+11}], v{vL16}, s[44:47], s58 offen sc1")
            k(f"    s_branch {l2}")
            k(f"{l1}:")
            k(f"    buffer_store_dwordx4 v[{T+8}:{T+11}], v{vL16}, s[44:47], s58 offen")
            k(f"{l2}:")
        else:
            k(f"    buffer_store_dwordx4 v[{T+8}:{T+11}], v{vL16}, s[44:47], s58 offen")
        if j < 6: k("    s_add_u32 s58, s58, 1024")

def emit_fused_kernel(k):
    name = "fused_kernel"
    kernel_head(k, name)
    guard(k, 256, "fused_done")
    if STAMP["on"]:
        k("    v_mov_b32 v15, 0")
        k(f"    s_mov_b32 s{sPASS}, 0")
        k("    s_memrealtime s[100:101]")
        k("    s_waitcnt lgkmcnt(0)")
        k("    v_writelane_b32 v15, s100, 30")
    pstamp(k, "start")
    load_args(k)
    k(f"""    v_readfirstlane_b32 s{sW}, v0
    s_lshr_b32 s{sW}, s{sW}, 6
    s_getreg_b32 s{sX}, hwreg(HW_REG_XCC_ID, 0, 4)
    s_and_b32 s{sX}, s{sX}, 7
    v_and_b32 v1, 63, v0
    v_lshlrev_b32 v{vL16}, 4, v1
    v_add_u32 v{vB2}, {2 * SLOT}, v{vL16}
    v_add_u32 v{vB4}, {4 * SLOT}, v{vL16}
    v_and_b32 v{vFLAG}, 15, v1
    v_lshlrev_b32 v{vFLAG}, 2, v{vFLAG}
    s_mov_b32 s{sEP}, 0
    s_waitcnt lgkmcnt(0)""")
    ws_shift(k)
    k(f"""    s_cmp_lg_u32 s{sW}, 0
    s_cbranch_scc1 fz_nt
    s_lshl_b32 s35, s{sX}, 7
    s_add_u32 s35, s35, {hex(FLAGS + 2048)}
    s_add_u32 s36, s{WS}, s35
    s_addc_u32 s37, s{WS+1}, 0
    s_mov_b32 s38, 128
    s_mov_b32 s39, 0x20000
    v_mov_b32 v6, 1
    v_mov_b32 v7, 0
    s_mov_b64 exec, 1
    buffer_atomic_add v6, v7, s[36:39], 0 offen sc0
    s_mov_b64 exec, -1
fz_nt:""")
    pstamp(k, "args")
    emit_conv2(k)
    k(f"""    s_lshl_b32 s34, s{sT}, 7
    s_add_u32 s34, s34, {hex(FLAGS)}
    s_add_u32 s{S_FL}, s{WS}, s34
    s_addc_u32 s{S_FL+1}, s{WS+1}, 0
    s_mov_b32 s{S_FL+2}, 128
    s_mov_b32 s{S_FL+3}, 0x20000""")
    global_barrier_and_w1(k)
    pstamp(k, "gbar")
    srd(k, 36, Q, S * D * 2)
    srd(k, 40, WS, S * D * 2, YT)
    srd(k, 44, WS, S * D * 2, X1)
    srd(k, 48, WS, S * D * 2, XS1)
    srd(k, 52, WS, S * D * 2, YR)
    def ln1_hook(k):
        k(f"""    s_lshl_b32 s90, s{sT}, 7
    s_lshl_b32 s91, s{sJ}, 3
    s_add_u32 s90, s90, s91              ; row0
    s_lshl_b32 s91, s90, 10
    s_add_u32 s91, s91, {hex(X1)}
    s_lshr_b32 s92, s90, 5
    s_lshl_b32 s92, s92, 15
    s_and_b32 s90, s90, 31
    s_lshl_b32 s90, s90, 4
    s_add_u32 s92, s92, s90
    s_add_u32 s92, s92, {hex(XS1)}
    s_cmp_eq_u32 s{sW}, 0
    s_cselect_b32 s91, s92, s91
    s_cselect_b64 vcc, -1, 0
    v_lshlrev_b32 v12, 9, v1
    v_cndmask_b32 v12, v13, v12, vcc
    s_cmp_ge_u32 s{sW}, 2
    s_cbranch_scc1 ln1_nt
    buffer_load_dword v14, v12, s[84:87], s91 offen
    s_waitcnt vmcnt(1)
    s_branch ln1_nt2
ln1_nt:
    s_waitcnt vmcnt(0)
ln1_nt2:""")
    emit_ln_stage(k, True, ln1_hook)
    pstamp(k, "ln1_done")
    for p in range(8): k(f"    s_mov_b32 s{72 + p}, {p}")
    k(f"    s_mov_b32 s{sPASS}, 0")
    k("chain_pass:")
    team_barrier(k, "tb")
    pstamp(k, "bar_ln", True)
    srd(k, 36, WS, S * D * 2, XS1)
    srd(k, 40, WS, 0x380000, W1S)
    srd(k, 44, WS, 0x700000, HS1)
    srd(k, 48, WS, 0x1C0000, W2S)
    k(f"""    s_mul_i32 s54, s{sJ}, {8 * SLOT}
    s_mul_i32 s55, s{sW}, 7168
    s_add_u32 s54, s54, s55""")
    emit_g1f(k)
    pstamp(k, "g1epi", True)
    team_barrier(k, "tb")
    pstamp(k, "bar_g1", True)
    srd(k, 36, WS, 0x700000, HS1)
    srd(k, 44, WS, S * D * 2, X1)
    k(f"    s_cmp_eq_u32 s{sPASS}, 0")
    k(f"    s_cbranch_scc0 chain_o2")
    srd(k, 48, WS, S * D * 2, X2)
    k("    s_branch chain_o3")
    k("chain_o2:")
    srd(k, 48, OUT, S * D * 2)
    k("chain_o3:")
    emit_g2(k)
    pstamp(k, "g2epi", True)
    k(f"    s_cmp_lg_u32 s{sPASS}, 0")
    k(f"    s_cbranch_scc1 chain_done2")
    if NPRE == 5:
        k("    s_barrier")
        srd(k, 40, WS, 0x380000, W1S)
        k(f"""    s_mul_i32 s54, s{sJ}, {8 * SLOT}
        s_mul_i32 s55, s{sW}, 7168
        s_add_u32 s54, s54, s55
        s_add_u32 s53, s54, {4 * SLOT}""")
        for i in range(7):
            k(f"    s_add_u32 m0, s55, {4 * SLOT + 1024 * i}")
            k(f"    buffer_load_dwordx4 v{vL16}, s[40:43], s53 offen lds")
            if i < 6: k(f"    s_add_u32 s53, s53, 1024")
    srd(k, 40, WS, S * D * 2, YR)
    k(f"""    s_lshl_b32 s34, s{sT}, 7
    s_lshl_b32 s35, s{sJ}, 3
    s_add_u32 s32, s34, s35
    s_lshl_b32 s34, s{sW}, 1
    s_add_u32 s34, s34, s32
    s_lshl_b32 s35, s34, 10
    buffer_load_dwordx4 v[88:91], v{vL16}, s[40:43], s35 offen sc1
    buffer_load_dwordx4 v[92:95], v{vL16}, s[40:43], s35 offen offset:1024 sc1""")
    team_barrier(k, "tb")
    pstamp(k, "bar_g2")
    srd(k, 36, WS, S * D * 2, X2)
    srd(k, 44, WS, S * D * 2, X1)
    srd(k, 48, WS, S * D * 2, XS1)
    emit_ln_stage(k, False)
    for p, c in enumerate((5, 6, 7, 3, 4, 0, 1, 2)): k(f"    s_mov_b32 s{72 + p}, {c}")
    k(f"    s_mov_b32 s{sPASS}, 1")
    pstamp(k, "ln2")
    k("    s_branch chain_pass")
    k("chain_done2:")
    if STAMP["on"]:
        k("    s_waitcnt vmcnt(0)")
        pstamp(k, "end")
        k("    s_memrealtime s[100:101]")
        k("    s_waitcnt lgkmcnt(0)")
        k("    v_writelane_b32 v15, s100, 31")
        k(f"""    s_add_u32 s36, s28, 0x3800000
    s_addc_u32 s37, s29, 0
    s_mov_b32 s38, 0x40000
    s_mov_b32 s39, 0x20000
    s_lshl_b32 s40, s2, 10
    v_lshlrev_b32 v1, 2, v0
    buffer_store_dword v15, v1, s[36:39], s40 offen
    s_waitcnt vmcnt(0)""")
        import json; json.dump(STN, open("stn.json", "w"))
    k("fused_done:")
    k("    s_endpgm")
    kernel_desc(k, name, 512, 102, accum=256)
```

```python
from common import *

def emit_kv(k, s_tb, s_cb, pfx, st=lambda n: None):
    srd(k, 36, KK, S * D * 2)
    srd(k, 40, VV, S * D * 2)
    srd(k, 44, SH, D * 4 * 2)
    srd(k, 48, WS, 0x220000, UR)
    k(f"""
    v_and_b32 v1, 7, v0                 ; cg
    v_lshrrev_b32 v2, 3, v0             ; tp
    v_lshlrev_b32 v3, 4, v1
    s_lshl_b32 s32, s{s_cb}, 7
    v_add_u32 v3, s32, v3
    v_lshlrev_b32 v4, 1, v2
    s_lshl_b32 s33, s{s_tb}, 6
    v_add_u32 v4, s33, v4               ; s0
    v_lshlrev_b32 v5, 10, v4
    v_add_u32 v5, v5, v3
    v_add_u32 v6, 0xfffff400, v5        ; row s0-3
    v_add_u32 v7, 0xfffff800, v5        ; row s0-2
    v_add_u32 v8, 0xfffffc00, v5        ; row s0-1
    v_lshlrev_b32 v9, 6, v1             ; 64*cg
    s_lshl_b32 s34, s{s_cb}, 9
    v_add_u32 v9, s34, v9
    buffer_load_dwordx4 v[16:19], v6, s[36:39], 0 offen
    buffer_load_dwordx4 v[20:23], v7, s[36:39], 0 offen
    buffer_load_dwordx4 v[24:27], v8, s[36:39], 0 offen
    buffer_load_dwordx4 v[28:31], v5, s[36:39], 0 offen
    buffer_load_dwordx4 v[32:35], v5, s[36:39], 0 offen offset:1024
    buffer_load_dwordx4 v[36:39], v5, s[40:43], 0 offen
    buffer_load_dwordx4 v[40:43], v5, s[40:43], 0 offen offset:1024
    buffer_load_dwordx4 v[44:47], v9, s[44:47], 0 offen
    buffer_load_dwordx4 v[48:51], v9, s[44:47], 0 offen offset:16
    buffer_load_dwordx4 v[52:55], v9, s[44:47], 0 offen offset:32
    buffer_load_dwordx4 v[56:59], v9, s[44:47], 0 offen offset:48
    v_mul_u32_u24 v10, 1056, v1
    v_sub_u32 v11, 31, v2
    v_lshlrev_b32 v11, 2, v11
    v_add_u32 v10, v10, v11""")
    st("issued")
    k("    s_waitcnt vmcnt(0)")
    st("loaded")
    for c in range(8):
        dd, hf = c >> 1, c & 1
        def unp(dst, src):
            if hf: k(f"    v_and_b32 v{dst}, 0xffff0000, v{src}")
            else:  k(f"    v_lshlrev_b32 v{dst}, 16, v{src}")
        for j in range(5): unp(60 + j, 16 + 4 * j + dd)
        unp(65, 36 + dd); unp(66, 40 + dd)
        wA, wB = 44 + 2 * c, 44 + 2 * c + 1
        k(f"    v_lshlrev_b32 v67, 16, v{wA}")
        k(f"    v_and_b32 v68, 0xffff0000, v{wA}")
        k(f"    v_lshlrev_b32 v69, 16, v{wB}")
        k(f"    v_and_b32 v70, 0xffff0000, v{wB}")
        k("    v_mul_f32 v71, v60, v70")
        k("    v_mul_f32 v72, v61, v70")
        k("    v_fmac_f32 v71, v61, v69")
        k("    v_fmac_f32 v72, v62, v69")
        k("    v_fmac_f32 v71, v62, v68")
        k("    v_fmac_f32 v72, v63, v68")
        k("    v_fmac_f32 v71, v63, v67")
        k("    v_fmac_f32 v72, v64, v67")
        k("    v_mul_f32 v71, v71, v65")
        k("    v_mul_f32 v72, v72, v66")
        k(f"    v_cvt_pk_bf16_f32 v{74 + c}, v72, v71")
    for c in range(8):
        k(f"    ds_write_b32 v10, v{74 + c} offset:{132 * c}")
    st("computed")
    k("""    s_waitcnt lgkmcnt(0)
    s_barrier
    v_lshrrev_b32 v12, 3, v0
    v_and_b32 v13, 7, v0                ; pc
    v_mul_u32_u24 v14, 132, v12
    v_lshlrev_b32 v15, 4, v13
    v_add_u32 v14, v14, v15
    ds_read2_b32 v[16:17], v14 offset0:0 offset1:1
    ds_read2_b32 v[18:19], v14 offset0:2 offset1:3
    v_add_u32 v14, 4224, v14            ; +32 rows * 132
    ds_read2_b32 v[20:21], v14 offset0:0 offset1:1
    ds_read2_b32 v[22:23], v14 offset0:2 offset1:3""")
    k(f"""
    s_lshl_b32 s32, s{s_cb}, 6
    v_add_u32 v12, s32, v12
    v_mul_u32_u24 v12, {URS}, v12
    v_add_u32 v12, v12, v15
    s_lshl_b32 s33, s{s_tb}, 7
    s_sub_u32 s33, 3968, s33
    v_add_u32 v24, s33, v12
    s_waitcnt lgkmcnt(0)
    buffer_store_dwordx4 v[16:19], v24, s[48:51], 0 offen
    v_add_u32 v25, {32 * URS}, v24
    buffer_store_dwordx4 v[20:23], v25, s[48:51], 0 offen
    s_cmp_lg_u32 s{s_tb}, 0
    s_cbranch_scc1 {pfx}_nopad
    v_mov_b32 v28, 0
    v_mov_b32 v29, 0
    v_mov_b32 v30, 0
    v_mov_b32 v31, 0
    v_add_u32 v26, 4096, v12
    v_add_u32 v27, {32 * URS + 4096}, v12
    buffer_store_dwordx4 v[28:31], v26, s[48:51], 0 offen
    buffer_store_dwordx4 v[28:31], v27, s[48:51], 0 offen
{pfx}_nopad:""")

def emit_w1s(k, s_fc, s_kc, st=lambda n: None):
    srd(k, 36, WG, D * F * 2)
    srd(k, 40, WU, D * F * 2)
    srd(k, 48, WS, 0x380000, W1S)
    k(f"""
    v_and_b32 v1, 63, v0                 ; lane
    v_readfirstlane_b32 s33, v0
    s_lshr_b32 s33, s33, 6               ; wave
    s_and_b32 s34, s33, 1
    s_lshr_b32 s35, s33, 1               ; gate/up
    s_lshl_b32 s52, s{s_kc}, 1
    s_add_u32 s52, s52, s34
    s_mul_i32 s52, s52, {32 * 3584}
    s_mul_i32 s53, s{s_fc}, 224
    s_add_u32 s52, s52, s53
    s_mul_i32 s53, s35, 14464
    s_mul_i32 s54, s34, {32 * 224}
    s_add_u32 s53, s53, s54
    s_cmp_eq_u32 s35, 0
    s_cselect_b32 s44, s36, s40
    s_cselect_b32 s45, s37, s41
    s_mov_b32 s46, s38
    s_mov_b32 s47, 0x20000
    s_mov_b32 s55, 4682""")
    for i in range(7):
        k(f"""    v_add_u32 v2, {64 * i}, v1
    v_mul_lo_u32 v3, v2, s55
    v_lshrrev_b32 v3, 16, v3             ; row = c/14
    v_mul_u32_u24 v4, 14, v3
    v_sub_u32 v4, v2, v4                 ; p
    v_mul_u32_u24 v3, 3584, v3
    v_lshlrev_b32 v4, 4, v4
    v_add_u32 v{8 + i}, v3, v4
    s_add_u32 m0, s53, {1024 * i}
    buffer_load_dwordx4 v{8 + i}, s[44:47], s52 offen lds""")
    k(f"""
    v_lshrrev_b32 v2, 4, v1              ; q
    v_and_b32 v3, 1, v2                  ; sel
    v_lshrrev_b32 v4, 1, v2              ; g
    v_mul_u32_u24 v3, 14464, v3
    v_lshlrev_b32 v4, 3, v4
    v_bfe_u32 v5, v1, 2, 2               ; r
    v_add_u32 v4, v4, v5
    s_lshl_b32 s54, s33, 4
    v_add_u32 v4, s54, v4
    v_mul_u32_u24 v4, 224, v4
    v_add_u32 v3, v3, v4
    v_and_b32 v5, 3, v1
    v_lshlrev_b32 v5, 3, v5
    v_add_u32 v3, v3, v5
    s_lshl_b32 s54, s{s_fc}, 3
    s_add_u32 s54, s54, s{s_kc}
    s_mul_i32 s54, s54, 28
    s_mul_i32 s56, s33, 7
    s_add_u32 s54, s54, s56
    s_lshl_b32 s54, s54, 10
    v_lshlrev_b32 v6, 4, v1""")
    st("w_issued")
    k("    s_waitcnt vmcnt(0)")
    st("w_loaded")
    k("    s_barrier")
    for j in range(7):
        k(f"    ds_read_b64_tr_b16 v[{16 + 4 * j}:{17 + 4 * j}], v3 offset:{32 * j}")
        k(f"    ds_read_b64_tr_b16 v[{18 + 4 * j}:{19 + 4 * j}], v3 offset:{32 * j + 4 * 224}")
    k("    s_waitcnt lgkmcnt(0)")
    for j in range(7):
        k(f"    buffer_store_dwordx4 v[{16 + 4 * j}:{19 + 4 * j}], v6, s[48:51], s54 offen")
        if j < 6: k("    s_add_u32 s54, s54, 1024")

def emit_w2s(k, s_dp, s_kr):
    srd(k, 44, WD, F * D * 2)
    srd(k, 48, WS, 0x1C0000, W2S)
    k(f"""
    v_and_b32 v1, 63, v0
    v_readfirstlane_b32 s33, v0
    s_lshr_b32 s33, s33, 6               ; wave
    s_mul_i32 s52, s{s_kr}, 224
    s_mul_i32 s53, s33, 56
    s_add_u32 s52, s52, s53
    s_lshl_b32 s52, s52, 10
    s_lshl_b32 s53, s{s_dp}, 7
    s_add_u32 s52, s52, s53
    v_lshrrev_b32 v2, 3, v1
    v_lshlrev_b32 v2, 10, v2
    v_and_b32 v3, 7, v1
    v_lshlrev_b32 v3, 4, v3
    v_add_u32 v2, v2, v3
    s_mul_i32 s53, s33, 7168""")
    for i in range(7):
        k(f"""    s_add_u32 m0, s53, {1024 * i}
    buffer_load_dwordx4 v2, s[44:47], s52 offen lds
    s_add_u32 s52, s52, 8192""")
    k(f"""
    v_lshrrev_b32 v2, 4, v1              ; q
    v_and_b32 v3, 1, v2                  ; dh
    v_lshrrev_b32 v4, 1, v2              ; g
    v_lshlrev_b32 v4, 2, v4
    v_bfe_u32 v5, v1, 2, 2
    v_add_u32 v4, v4, v5                 ; 4g + r
    v_lshlrev_b32 v4, 7, v4
    v_lshlrev_b32 v3, 5, v3              ; 16dh*2
    v_add_u32 v4, v4, v3
    v_and_b32 v5, 3, v1
    v_lshlrev_b32 v5, 3, v5
    v_add_u32 v4, v4, v5
    s_mul_i32 s54, s{s_dp}, 224
    s_mul_i32 s56, s{s_kr}, 28
    s_add_u32 s54, s54, s56
    s_mul_i32 s56, s33, 7
    s_add_u32 s54, s54, s56
    s_lshl_b32 s54, s54, 10
    v_lshlrev_b32 v6, 4, v1
    s_waitcnt vmcnt(0)
    s_barrier""")
    for i in range(7):
        k(f"""    s_add_u32 s57, s56, {i}
    s_lshr_b32 s58, s57, 1
    s_lshl_b32 s58, s58, 11
    s_and_b32 s57, s57, 1
    s_lshl_b32 s57, s57, 6
    s_add_u32 s58, s58, s57
    v_add_u32 v7, s58, v4
    ds_read_b64_tr_b16 v[{16 + 4 * i}:{17 + 4 * i}], v7
    ds_read_b64_tr_b16 v[{18 + 4 * i}:{19 + 4 * i}], v7 offset:1024""")
    k("    s_waitcnt lgkmcnt(0)")
    for i in range(7):
        k(f"    buffer_store_dwordx4 v[{16 + 4 * i}:{19 + 4 * i}], v6, s[48:51], s54 offen")
        if i < 6: k("    s_add_u32 s54, s54, 1024")

def emit_pre_kernel(k):
    kernel_head(k, "pre_kernel")
    guard(k, 448, "pre_done")
    st = Stamper(k, 95, 1); st.begin()
    load_args(k)
    k("    s_waitcnt lgkmcnt(0)")
    ws_shift(k)
    st("args")
    k("    s_cmp_ge_u32 s2, 256")
    k("    s_cbranch_scc1 pre_w")
    k(f"""    s_cmp_lg_u32 s2, 0
    s_cbranch_scc1 pre_nz
    s_add_u32 s36, s{WS}, {hex(FLAGS)}
    s_addc_u32 s37, s{WS+1}, 0
    s_mov_b32 s38, 8192
    s_mov_b32 s39, 0x20000
    v_lshlrev_b32 v1, 4, v0
    v_mov_b32 v4, 0
    v_mov_b32 v5, 0
    v_mov_b32 v6, 0
    v_mov_b32 v7, 0
    buffer_store_dwordx4 v[4:7], v1, s[36:39], 0 offen
    v_add_u32 v1, 4096, v1
    buffer_store_dwordx4 v[4:7], v1, s[36:39], 0 offen
pre_nz:""")
    k("    s_lshr_b32 s30, s2, 3")
    k("    s_and_b32 s31, s2, 7")
    emit_kv(k, 30, 31, "pre", st)
    st.end()
    k("    s_branch pre_done")
    k("pre_w:")
    k("    s_cmp_ge_u32 s2, 384")
    k("    s_cbranch_scc1 pre_w2")
    k("    s_sub_u32 s30, s2, 256")
    k("    s_and_b32 s31, s30, 7")
    k("    s_lshr_b32 s30, s30, 3")
    n0 = st.n; st.n = 16; STAMP_NAMES[1] += ["-"] * (16 - len(STAMP_NAMES[1]))
    emit_w1s(k, 30, 31, st)
    st.end()
    k("    s_branch pre_done")
    k("pre_w2:")
    k("    s_sub_u32 s30, s2, 384")
    k("    s_and_b32 s31, s30, 7")
    k("    s_lshr_b32 s30, s30, 3")
    emit_w2s(k, 30, 31)
    k("pre_done:")
    k("    s_endpgm")
    kernel_desc(k, "pre_kernel", 96, 102)
```

```python
from common import *
from pre import *
from fused import *
hdr = open("interleave_layers__ssm_conv_h3__glu_gated_geglu__prompt.s.ref").read().split("\n")
if "--stamp" in sys.argv: STAMP["on"] = True
k = K()
for ln in hdr:
    if ln.startswith("; Kernarg") or ln.startswith(";   offset"): k(ln)
k("; @launch kernel=pre_kernel grid=(448,1,1) block=(256,1,1) lds=29184")
k(f"; @launch kernel=fused_kernel grid=(256,1,1) block=(256,1,1) lds={CHAIN_LDS}")
k('.amdgcn_target "amdgcn-amd-amdhsa--gfx950"')
emit_pre_kernel(k)
emit_fused_kernel(k)
out = sys.argv[1] if len(sys.argv) > 1 else "v4.s"
open(out, "w").write(k.text())
```

```python
import sys; sys.path.insert(0, "tools")
from asmlib import *

S, D, F = 2048, 512, 1792
Q, KK, VV, SH, SSMK, SSMD, BX, WG, WU, WD, OUT, DBG, WS = 4, 6, 8, 10, 12, 14, 16, 18, 20, 22, 24, 26, 28

URS   = 4224
UR    = 0x0000000
YT    = 0x0400000
W1S   = 0x0800000
W2S   = 0x0C00000
XS1   = 0x1000000
XS2   = 0x1200000
X1    = 0x1400000
X2    = 0x1600000
X3    = 0x1800000
YR    = 0x1A00000
HS1   = 0x2000000
HS2   = 0x2800000
FLAGS = 0x3000000
WS_BYTES = 268435456

import os
WSBASE = int(os.environ.get("WSBASE", "0"), 0)
def load_args(k):
    k("""    s_load_dwordx16 s[4:19], s[0:1], 0
    s_load_dwordx8 s[20:27], s[0:1], 64
    s_load_dwordx2 s[28:29], s[0:1], 96""")
def ws_shift(k):
    if WSBASE:
        k(f"    s_add_u32 s28, s28, {hex(WSBASE)}")
        k("    s_addc_u32 s29, s29, 0")

def srd(k, dst, base, size, add=0):
    if add:
        k(f"    s_add_u32 s{dst}, s{base}, {hex(add)}")
        k(f"    s_addc_u32 s{dst+1}, s{base+1}, 0")
    else:
        k(f"    s_mov_b32 s{dst}, s{base}")
        k(f"    s_mov_b32 s{dst+1}, s{base+1}")
    k(f"    s_mov_b32 s{dst+2}, {hex(size)}")
    k(f"    s_mov_b32 s{dst+3}, 0x20000")

def guard(k, n, lab):
    k(f"    s_cmp_ge_u32 s2, {n}")
    k(f"    s_cbranch_scc1 {lab}")


STAMP = {"on": False, "n": 0}
def stamp(k):
    if not STAMP["on"]: return
    i = STAMP["n"]; STAMP["n"] += 1
    assert i < 20
    k(f"    s_memtime s[100:101]")
    k(f"    s_waitcnt lgkmcnt(0)")
    k(f"    s_mov_b32 s{80 + i}, s100")
def stamp_rt(k):
    if not STAMP["on"]: return
    i = STAMP["n"]; STAMP["n"] += 1
    k(f"    s_memrealtime s[100:101]")
    k(f"    s_waitcnt lgkmcnt(0)")
    k(f"    s_mov_b32 s{80 + i}, s100")
def stamp_reset():
    STAMP["n"] = 0
def stamp_dump(k, slot):
    if not STAMP["on"]: return
    n = STAMP["n"]
    k(f"    s_add_u32 s36, s28, {hex(0x3800000 + slot * 0x10000)}")
    k("    s_addc_u32 s37, s29, 0")
    k("    s_mov_b32 s38, 0x10000")
    k("    s_mov_b32 s39, 0x20000")
    k("    s_lshl_b32 s40, s2, 7")
    k("    v_mov_b32 v0, 0")
    for i in range(n):
        k(f"    v_mov_b32 v1, s{80 + i}")
        k(f"    buffer_store_dword v1, v0, s[36:39], s40 offen offset:{4 * i}")
    k("    s_waitcnt vmcnt(0)")

import json
STAMP_NAMES = {}
class Stamper:
    def __init__(self, k, vreg, slot):
        self.k, self.v, self.slot, self.n = k, vreg, slot, 0
        STAMP_NAMES[slot] = []
    def begin(self):
        if not STAMP["on"]: return
        k = self.k
        k(f"    v_mov_b32 v{self.v}, 0")
        k("    s_memrealtime s[100:101]")
        k("    s_waitcnt lgkmcnt(0)")
        k(f"    v_writelane_b32 v{self.v}, s100, 62")
        self("start")
    def __call__(self, name):
        if not STAMP["on"]: return
        k = self.k
        k("    s_memtime s[100:101]")
        k("    s_waitcnt lgkmcnt(0)")
        k(f"    v_writelane_b32 v{self.v}, s100, {self.n}")
        STAMP_NAMES[self.slot].append(name); self.n += 1
    def end(self):
        if not STAMP["on"]: return
        k = self.k
        k("    s_waitcnt vmcnt(0)")
        self("end")
        k("    s_memrealtime s[100:101]")
        k("    s_waitcnt lgkmcnt(0)")
        k(f"    v_writelane_b32 v{self.v}, s100, 63")
        k(f"""    s_add_u32 s36, s28, {hex(0x3900000 + self.slot * 0x100000)}
    s_addc_u32 s37, s29, 0
    s_mov_b32 s38, 0x100000
    s_mov_b32 s39, 0x20000
    s_lshl_b32 s40, s2, 10
    v_lshlrev_b32 v1, 2, v0
    buffer_store_dword v{self.v}, v1, s[36:39], s40 offen
    s_waitcnt vmcnt(0)""")
        json.dump(STAMP_NAMES, open("stn2.json", "w"))
```
